```python
import torch

def _softmax(x, axis=-1):
    return torch.softmax(x, dim=axis)
def _gelu(x):
    return torch.nn.functional.gelu(x, approximate="tanh")
def _silu(x):
    return torch.nn.functional.silu(x)
def _sigmoid(x):
    return torch.sigmoid(x)
def _layernorm(x, axis=-1, eps=1e-5):
    m = x.mean(dim=axis, keepdim=True)
    v = x.var(dim=axis, keepdim=True, unbiased=False)
    return (x - m) / torch.sqrt(v + eps)
def _scatter_add(tgt, idx, src, axis=0):
    return tgt.clone().index_add_(axis, idx, src)
def _segment_sum(src, seg, n):
    out = torch.zeros((n,) + src.shape[1:], dtype=src.dtype)
    return out.index_add_(0, seg, src)
def _pad(x, pw):
    flat = tuple(v for pair in reversed(pw) for v in pair)
    return torch.nn.functional.pad(x, flat)

kernel_name = 'standalone__dense_activation_squared_relu__prompt'

def setup_inputs():

    _w = (lambda a: (lambda t: t.to(torch.bfloat16) if t.is_floating_point() else t)(torch.as_tensor(a)))
    B, S, D, F = 1, 2048, 640, 1728
    return {
        "x": _w((lambda *s: torch.randn(*s, dtype=torch.bfloat16) * 0.05)(B, S, D)),
        "w1": _w((lambda *s: torch.randn(*s, dtype=torch.bfloat16) * 0.05)(D, F)),
        "b1": _w((lambda *s: torch.randn(*s, dtype=torch.bfloat16) * 0.05)(F)),
        "w2": _w((lambda *s: torch.randn(*s, dtype=torch.bfloat16) * 0.05)(F, D)),
        "b2": _w((lambda *s: torch.randn(*s, dtype=torch.bfloat16) * 0.05)(D)),
    }

def reference(x, w1, b1, w2, b2):
    h = torch.einsum("bsd,df->bsf", x, w1) + b1
    zero = torch.zeros_like(h)
    r = torch.where(h > zero, h, zero)
    h = r * r
    out = torch.einsum("bsf,fd->bsd", h, w2) + b2
    return out
```

```python
import sys

S_, D_, F_ = 2048, 640, 1728


class Asm:
    def __init__(self):
        self.lines = []

    def __call__(self, s):
        self.lines.append("    " + s)

    def label(self, s):
        self.lines.append(s + ":")

    def comment(self, s):
        self.lines.append("    ; " + s)

    def text(self):
        return "\n".join(self.lines) + "\n"


class VmSim:
    def __init__(self):
        self.ops = []

    def issue(self, tag, n=1):
        self.ops += [tag] * n

    def count_after(self, tag):
        last = max(i for i, t in enumerate(self.ops) if t == tag)
        return len(self.ops) - 1 - last


def gen_gemm_a(a, cfg):
    name = cfg["name"]
    MB, NT, K = cfg["MB"], cfg["NT"], cfg["K"]
    pA, pW, pO = cfg["pitchA"], cfg["pitchW"], cfg["pitchO"]
    P, Dslots = cfg["P"], cfg["D"]
    assert NT == 8, "swizzle assumes 256-byte LDS rows"
    RB = 32 * NT
    SLOT = 64 * RB
    NS = K // 64
    assert K % 64 == 0
    assert Dslots >= min(NS, P + 2)
    NDMA = RB // 64
    vTid = 0
    vL, vG, vI16, vTmp0, vTmp1, vTmp2 = 1, 2, 3, 4, 5, 6
    vOffA = 8
    vOffO = vOffA + MB
    vOffW = vOffO + MB
    vVa = vOffW + NDMA
    vBias = 32
    vAcc = 48
    assert vVa + NT <= vBias and vBias + 2 * NT <= vAcc
    vWf = vAcc + MB * NT * 4
    vWf = (vWf + 3) // 4 * 4
    nV = vWf + 2 * NT * 4
    XSL = P + 1
    nA = XSL * 2 * MB * 4

    def acc(mb, j):
        return vAcc + (mb * NT + j) * 4

    def wf(buf, j):
        return vWf + (buf * NT + j) * 4

    def xf(s, q, mb):
        return ((s % XSL) * 2 + q) * MB * 4 + mb * 4

    sA, sW, sB, sO = 4, 8, 12, 16
    sWave, sM0, sN0, sT0, sT1, sMt, sNt, sSoff = 20, 21, 22, 23, 24, 25, 26, 27

    a.lines.append(f".globl {name}")
    a.lines.append(".p2align 8")
    a.lines.append(f".type {name},@function")
    a.label(name)
    a(f"s_cmp_ge_u32 s2, {cfg['NWG']}")
    a(f"s_cbranch_scc1 L_{name}_end")
    a(f"s_load_dwordx2 s[{sA}:{sA+1}], s[0:1], {cfg['argA']}")
    a(f"s_load_dwordx2 s[{sW}:{sW+1}], s[0:1], {cfg['argW']}")
    a(f"s_load_dwordx2 s[{sB}:{sB+1}], s[0:1], {cfg['argB']}")
    a(f"s_load_dwordx2 s[{sO}:{sO+1}], s[0:1], {cfg['argO']}")
    cfg["tilemap"](a, sMt, sNt, sT0, sT1)
    a(f"s_mul_i32 s{sM0}, s{sMt}, {64 * MB}")
    a(f"s_mul_i32 s{sN0}, s{sNt}, {16 * NT}")
    a(f"v_and_b32 v{vL}, 63, v{vTid}")
    a(f"v_lshrrev_b32 v{vG}, 4, v{vL}")
    a(f"v_and_b32 v{vI16}, 15, v{vL}")
    a(f"v_lshrrev_b32 v{vTmp0}, 6, v{vTid}")
    a("s_nop 1")
    a(f"v_readfirstlane_b32 s{sWave}, v{vTmp0}")
    a(f"v_mul_u32_u24 v{vTmp1}, {16 * MB}, v{vTmp0}")
    a(f"v_add3_u32 v{vTmp1}, v{vTmp1}, v{vI16}, s{sM0}")
    a(f"v_lshlrev_b32 v{vTmp2}, 4, v{vG}")
    for mb in range(MB):
        a(f"v_mul_u32_u24 v{vOffA+mb}, {pA}, v{vTmp1}")
        a(f"v_add_u32 v{vOffA+mb}, v{vOffA+mb}, v{vTmp2}")
        a(f"v_mul_u32_u24 v{vOffO+mb}, {pO}, v{vTmp1}")
        if mb + 1 < MB:
            a(f"v_add_u32 v{vTmp1}, 16, v{vTmp1}")
    a(f"v_lshlrev_b32 v{vTmp2}, 3, v{vG}")
    a(f"s_lshl_b32 s{sT0}, s{sN0}, 1")
    a(f"v_add_u32 v{vTmp2}, s{sT0}, v{vTmp2}")
    for mb in range(MB):
        a(f"v_add_u32 v{vOffO+mb}, v{vOffO+mb}, v{vTmp2}")
    vBiasOff = vTmp2
    a(f"v_lshlrev_b32 v{vTmp1}, 4, v{vTmp0}")
    a(f"v_add_u32 v{vTmp1}, v{vTmp1}, v{vG}")
    for t in range(NDMA):
        a(f"v_lshlrev_b32 v{vOffW+t}, 1, v{vG}")
        a(f"v_xor_b32 v{vOffW+t}, v{vOffW+t}, v{vI16}")
        if (t >> 1) & 1:
            a(f"v_xor_b32 v{vOffW+t}, 8, v{vOffW+t}")
        a(f"v_lshlrev_b32 v{vOffW+t}, 4, v{vOffW+t}")
    a(f"s_mov_b32 s{sT1}, {pW}")
    for t in range(NDMA):
        a(f"v_add_u32 v{vWf}, {4 * t}, v{vTmp1}")
        a(f"v_mul_lo_u32 v{vWf}, v{vWf}, s{sT1}")
        a(f"v_add3_u32 v{vOffW+t}, v{vOffW+t}, v{vWf}, s{sT0}")
    a(f"v_bfe_u32 v{vTmp0}, v{vL}, 2, 2")
    a(f"v_and_b32 v{vTmp1}, 1, v{vG}")
    a(f"v_lshl_add_u32 v{vTmp1}, v{vTmp1}, 2, v{vTmp0}")
    a(f"v_lshl_add_u32 v{vTmp0}, v{vG}, 3, v{vTmp0}")
    a(f"v_lshlrev_b32 v{vTmp0}, 8, v{vTmp0}")
    a(f"v_and_b32 v{vWf}, 3, v{vL}")
    a(f"v_lshl_add_u32 v{vTmp0}, v{vWf}, 3, v{vTmp0}")
    for j in range(NT):
        a(f"v_xor_b32 v{vVa+j}, {j}, v{vTmp1}")
        a(f"v_lshl_add_u32 v{vVa+j}, v{vVa+j}, 5, v{vTmp0}")
    a(f"s_lshl_b32 s{sWave}, s{sWave}, {(16 * RB).bit_length() - 1}")
    a("s_waitcnt lgkmcnt(0)")
    for sr, nb in ((sA, cfg["bytesA"]), (sW, cfg["bytesW"]), (sB, cfg["bytesB"]), (sO, cfg["bytesO"])):
        a(f"s_mov_b32 s{sr+2}, {nb}")
        a(f"s_mov_b32 s{sr+3}, 0x00020000")
    if cfg.get("A_in_ws_off"):
        pass
    vm = VmSim()
    for j in range(NT):
        a(f"buffer_load_dwordx2 v[{vBias+2*j}:{vBias+2*j+1}], v{vBiasOff}, s[{sB}:{sB+3}], 0 offen offset:{32*j}")
        vm.issue("bias")

    def issue_stage(s):
        slot = s % Dslots
        a(f"s_mov_b32 s{sSoff}, {s * 64 * pW}")
        for t in range(NDMA):
            a(f"s_add_u32 m0, s{sWave}, {slot * SLOT + t * 1024}")
            a("s_nop 0")
            a(f"buffer_load_dwordx4 v{vOffW+t}, s[{sW}:{sW+3}], s{sSoff} offen lds")
            vm.issue(("dma", s))
        for q in range(2):
            for mb in range(MB):
                r = xf(s, q, mb)
                a(f"buffer_load_dwordx4 a[{r}:{r+3}], v{vOffA+mb}, s[{sA}:{sA+3}], 0 offen offset:{128*s+64*q}")
                vm.issue(("x", s))

    def tr_list(u):
        s, q = u // 2, u % 2
        buf = u & 1
        out = []
        for j in range(NT):
            for h in range(2):
                r = wf(buf, j) + 2 * h
                out.append(f"ds_read_b64_tr_b16 v[{r}:{r+1}], v{vVa+j} offset:{8192*q+1024*h}")
        return out

    for s in range(min(P, NS)):
        issue_stage(s)
    a(f"s_waitcnt vmcnt({min(63, vm.count_after('bias'))})")
    for j in range(NT):
        for mb in range(MB):
            r = acc(mb, j)
            a(f"v_lshlrev_b32 v{r}, 16, v{vBias+2*j}")
            a(f"v_and_b32 v{r+1}, 0xffff0000, v{vBias+2*j}")
            a(f"v_lshlrev_b32 v{r+2}, 16, v{vBias+2*j+1}")
            a(f"v_and_b32 v{r+3}, 0xffff0000, v{vBias+2*j+1}")
    a(f"s_waitcnt vmcnt({min(63, vm.count_after(('dma', 0)))})")
    a("s_barrier")
    for ins in tr_list(0):
        a(ins)
    cur_slot = 0
    for u in range(2 * NS):
        s, q = u // 2, u % 2
        if q == 0 and s + P < NS:
            issue_stage(s + P)
        has_next = u + 1 < 2 * NS
        if has_next and q == 1:
            a(f"s_waitcnt vmcnt({vm.count_after(('dma', s + 1))})")
            a("s_barrier")
            nslot = (s + 1) % Dslots
            delta = (nslot - cur_slot) * SLOT
            cur_slot = nslot
            for j in range(NT):
                a(f"v_add_u32 v{vVa+j}, {delta & 0xffffffff:#x}, v{vVa+j}")
        w = []
        if q == 0:
            w.append(f"vmcnt({vm.count_after(('x', s))})")
        w.append("lgkmcnt(0)")
        a("s_waitcnt " + " ".join(w))
        trs = tr_list(u + 1) if has_next else []
        nm = MB * NT
        per = (len(trs) + nm - 1) // nm
        for mb in range(MB):
            for j in range(NT):
                r = acc(mb, j)
                x = xf(s, q, mb)
                b = wf(u & 1, j)
                a(f"v_mfma_f32_16x16x32_bf16 v[{r}:{r+3}], v[{b}:{b+3}], a[{x}:{x+3}], v[{r}:{r+3}]")
                for ins in trs[:per]:
                    a(ins)
                trs = trs[per:]
    a("s_nop 7")
    a("s_nop 7")
    ntv_label_done = f"L_{name}_stores_done"
    for j in range(NT):
        if cfg.get("ragged_nt") is not None and j == cfg["ragged_nt"][1]:
            a(f"s_cmp_eq_u32 s{sNt}, {cfg['ragged_nt'][0]}")
            a(f"s_cbranch_scc1 {ntv_label_done}")
        for mb in range(MB):
            r = acc(mb, j)
            if cfg["epilogue"] == "relu2":
                for e in range(4):
                    a(f"v_max_f32 v{r+e}, 0, v{r+e}")
                for e in range(4):
                    a(f"v_mul_f32 v{r+e}, v{r+e}, v{r+e}")
            a(f"v_cvt_pk_bf16_f32 v{r}, v{r}, v{r+1}")
            a(f"v_cvt_pk_bf16_f32 v{r+1}, v{r+2}, v{r+3}")
            a(f"buffer_store_dwordx2 v[{r}:{r+1}], v{vOffO+mb}, s[{sO}:{sO+3}], 0 offen offset:{32*j}")
    a.label(ntv_label_done)
    a.label(f"L_{name}_end")
    a("s_endpgm")
    accum = (nV + 3) // 4 * 4
    kd = f""".section .rodata,"a"
.p2align 6
.amdhsa_kernel {name}
  .amdhsa_next_free_vgpr {accum + nA}
  .amdhsa_next_free_sgpr 40
  .amdhsa_accum_offset {accum}
  .amdhsa_group_segment_fixed_size 0
  .amdhsa_kernarg_size 64
  .amdhsa_user_sgpr_count 2
  .amdhsa_user_sgpr_kernarg_segment_ptr 1
  .amdhsa_system_sgpr_workgroup_id_x 1
.end_amdhsa_kernel
.text
"""
    a.lines.append(kd)
    return Dslots * SLOT


def tilemap_k1(a, sMt, sNt, sT0, sT1):
    a(f"s_and_b32 s{sT0}, s2, 7")
    a(f"s_lshr_b32 s{sT1}, s2, 3")
    a(f"s_mul_i32 s{sMt}, s{sT1}, 37")
    a(f"s_lshr_b32 s{sMt}, s{sMt}, 8")
    a(f"s_mul_i32 s{sNt}, s{sMt}, 7")
    a(f"s_sub_u32 s{sNt}, s{sT1}, s{sNt}")
    a(f"s_lshr_b32 s{sT1}, s{sT0}, 1")
    a(f"s_lshl_b32 s{sT1}, s{sT1}, 2")
    a(f"s_add_u32 s{sMt}, s{sMt}, s{sT1}")
    a(f"s_and_b32 s{sT0}, s{sT0}, 1")
    a(f"s_mul_i32 s{sT0}, s{sT0}, 7")
    a(f"s_add_u32 s{sNt}, s{sNt}, s{sT0}")


def tilemap_k2a(a, sMt, sNt, sT0, sT1):
    a(f"s_and_b32 s{sT0}, s2, 7")
    a(f"s_lshr_b32 s{sT1}, s2, 3")
    a(f"s_mul_i32 s{sMt}, s{sT1}, 52")
    a(f"s_lshr_b32 s{sMt}, s{sMt}, 8")
    a(f"s_mul_i32 s{sNt}, s{sMt}, 5")
    a(f"s_sub_u32 s{sNt}, s{sT1}, s{sNt}")
    a(f"s_lshl_b32 s{sT0}, s{sT0}, 2")
    a(f"s_add_u32 s{sMt}, s{sMt}, s{sT0}")


HEADER = """; Kernarg layout for this problem (64 bytes, ptrs only, base s[0:1]):
"""


def main():
    out = sys.argv[1] if len(sys.argv) > 1 else "standalone__dense_activation_squared_relu__prompt.s"
    a = Asm()
    k1 = dict(name="ffn1_kernel", NWG=224, MB=2, NT=8, K=640, pitchA=1280, pitchW=3456, pitchO=3456,
              argA=0, argW=8, argB=16, argO=56,
              bytesA=S_ * D_ * 2, bytesW=D_ * F_ * 2, bytesB=F_ * 2, bytesO=S_ * F_ * 2,
              tilemap=tilemap_k1, epilogue="relu2", P=6, D=10, ragged_nt=(13, 4))
    k2 = dict(name="ffn2_kernel", NWG=160, MB=1, NT=8, K=1728, pitchA=3456, pitchW=1280, pitchO=1280,
              argA=56, argW=24, argB=32, argO=40,
              bytesA=S_ * F_ * 2, bytesW=F_ * D_ * 2, bytesB=D_ * 2, bytesO=S_ * D_ * 2,
              tilemap=tilemap_k2a, epilogue="bias", P=6, D=8, ragged_nt=None)
    lds1 = gen_gemm_a(a, k1)
    lds2 = gen_gemm_a(a, k2)
    hdr = HEADER
    hdr += f"; @launch kernel=ffn1_kernel grid=({k1['NWG']},1,1) block=(256,1,1) lds={lds1}\n"
    hdr += f"; @launch kernel=ffn2_kernel grid=({k2['NWG']},1,1) block=(256,1,1) lds={lds2}\n"
    hdr += '.amdgcn_target "amdgcn-amd-amdhsa--gfx950"\n.text\n'
    open(out, "w").write(hdr + a.text())
    print("wrote", out, "lds", lds1, lds2)


if __name__ == "__main__":
    main()
```

```python
import sys, os
DBG = set(os.environ.get('GEN_DBG', '').split(','))

S_, D_, F_ = 2048, 640, 1728


class Asm:
    def __init__(self):
        self.lines = []

    def __call__(self, s):
        self.lines.append("    " + s)

    def label(self, s):
        self.lines.append(s + ":")

    def comment(self, s):
        self.lines.append("    ; " + s)

    def text(self):
        return "\n".join(self.lines) + "\n"


class VmSim:
    def __init__(self):
        self.ops = []

    def issue(self, tag, n=1):
        self.ops += [tag] * n

    def count_after(self, tag):
        last = max(i for i, t in enumerate(self.ops) if t == tag)
        return len(self.ops) - 1 - last


def gen_gemm(a, cfg):
    name = cfg["name"]
    MB, NT, K = cfg["MB"], cfg["NT"], cfg["K"]
    pA, pW, pO = cfg["pitchA"], cfg["pitchW"], cfg["pitchO"]
    P, Dslots = cfg["P"], cfg["D"]
    P0 = cfg.get('P0', 2)
    assert NT == 8
    RB = 32 * NT
    XB = 64 * MB * 128
    WB = 64 * RB
    SLOT = XB + WB
    NS = K // 64
    assert K % 64 == 0
    assert Dslots >= min(NS, P + 2)
    NDX = 2 * MB
    NDW = RB // 64
    vTid = 0
    vL, vG, vI16, vT0, vT1, vT2, vT3 = 1, 2, 3, 4, 5, 6, 7
    vOffX = 8
    vOffW = 12
    vVaX = 16
    vVaW = 18
    vOffS = 26
    vEw = 27
    vEr = 28
    vTl = 29
    vT2l = 30
    vBiasOff = 31
    vTouch = 48
    TD = cfg.get('T', 0)
    vBias = 32
    vAcc = 52
    vWf = vAcc + MB * NT * 4
    vXf = vWf + 2 * NT * 4
    nV = vXf + 2 * MB * 4

    def acc(mb, j):
        return vAcc + (mb * NT + j) * 4

    def wf(buf, j):
        return vWf + (buf * NT + j) * 4

    def xf(buf, mb):
        return vXf + (buf * MB + mb) * 4

    sA, sW, sB, sO = 4, 8, 12, 16
    sWaveX, sWaveW, sM0, sN0, sT0, sT1, sMt, sNt, sSoff = 20, 21, 22, 23, 24, 25, 26, 27, 28
    sKW, sKX, sRot, sWaveId = 29, 30, 31, 32
    STAMP = 'stamp' in DBG
    stamps = []

    def stamp():
        if STAMP:
            r = 40 + 2 * len(stamps)
            stamps.append(r)
            a(f"s_memtime s[{r}:{r+1}]")

    a.lines.append(f".globl {name}")
    a.lines.append(".p2align 8")
    a.lines.append(f".type {name},@function")
    a.label(name)
    a(f"s_cmp_ge_u32 s2, {cfg['NWG']}")
    a(f"s_cbranch_scc1 L_{name}_end")
    stamp()
    a(f"s_load_dwordx2 s[{sA}:{sA+1}], s[0:1], {cfg['argA']}")
    a(f"s_load_dwordx2 s[{sW}:{sW+1}], s[0:1], {cfg['argW']}")
    a(f"s_load_dwordx2 s[{sB}:{sB+1}], s[0:1], {cfg['argB']}")
    a(f"s_load_dwordx2 s[{sO}:{sO+1}], s[0:1], {cfg['argO']}")
    cfg["tilemap"](a, sMt, sNt, sT0, sT1)
    if cfg.get("ROT", 1):
        a(f"s_lshr_b32 s{sRot}, s2, 3")
        a(f"s_mul_i32 s{sRot}, s{sRot}, {cfg.get('ROTMUL', 1)}")
        for _ in range(cfg.get('ROTRED', 3)):
            a(f"s_cmp_ge_u32 s{sRot}, {NS}")
            a(f"s_cselect_b32 s{sT0}, {NS}, 0")
            a(f"s_sub_u32 s{sRot}, s{sRot}, s{sT0}")
    else:
        a(f"s_mov_b32 s{sRot}, 0")
    a(f"s_mul_i32 s{sKW}, s{sRot}, {64 * pW}")
    a(f"s_lshl_b32 s{sKX}, s{sRot}, 7")
    a(f"s_mul_i32 s{sM0}, s{sMt}, {64 * MB}")
    a(f"s_mul_i32 s{sN0}, s{sNt}, {16 * NT}")
    a(f"v_and_b32 v{vL}, 63, v{vTid}")
    a(f"v_lshrrev_b32 v{vG}, 4, v{vL}")
    a(f"v_and_b32 v{vI16}, 15, v{vL}")
    a(f"v_lshrrev_b32 v{vT0}, 6, v{vTid}")
    a("s_nop 1")
    a(f"v_readfirstlane_b32 s{sWaveId}, v{vT0}")
    a(f"v_and_b32 v{vT0}, 3, v{vT0}")
    a(f"s_and_b32 s{sWaveX}, s{sWaveId}, 3")
    a(f"s_lshl_b32 s{sT0}, s{sN0}, 1")
    a(f"s_mov_b32 s{sT1}, {pA}")
    a(f"v_mul_u32_u24 v{vT1}, {16 * MB}, v{vT0}")
    a(f"v_lshrrev_b32 v{vT2}, 3, v{vL}")
    a(f"v_add3_u32 v{vT1}, v{vT1}, v{vT2}, s{sM0}")
    a(f"v_and_b32 v{vT2}, 7, v{vL}")
    for t in range(NDX):
        a(f"v_xor_b32 v{vT3}, {(4 * t) & 7}, v{vG}")
        a(f"v_xor_b32 v{vT3}, v{vT3}, v{vT2}")
        a(f"v_add_u32 v{vOffX+t}, {8 * t}, v{vT1}")
        a(f"v_mul_lo_u32 v{vOffX+t}, v{vOffX+t}, s{sT1}")
        a(f"v_lshl_add_u32 v{vOffX+t}, v{vT3}, 4, v{vOffX+t}")
    a(f"s_mov_b32 s{sT1}, {pW}")
    a(f"v_lshl_add_u32 v{vT1}, v{vT0}, 4, v{vG}")
    for t in range(NDW):
        a(f"v_lshlrev_b32 v{vT3}, 1, v{vG}")
        a(f"v_xor_b32 v{vT3}, v{vT3}, v{vI16}")
        if (t >> 1) & 1:
            a(f"v_xor_b32 v{vT3}, 8, v{vT3}")
        a(f"v_add_u32 v{vOffW+t}, {4 * t}, v{vT1}")
        a(f"v_mul_lo_u32 v{vOffW+t}, v{vOffW+t}, s{sT1}")
        a(f"v_lshl_add_u32 v{vT3}, v{vT3}, 4, s{sT0}")
        a(f"v_add_u32 v{vOffW+t}, v{vOffW+t}, v{vT3}")
    a(f"v_lshrrev_b32 v{vT2}, 1, v{vI16}")
    a(f"v_mul_u32_u24 v{vT1}, {2048 * MB}, v{vT0}")
    a(f"v_lshl_add_u32 v{vT1}, v{vI16}, 7, v{vT1}")
    for q in range(2):
        a(f"v_xor_b32 v{vT3}, {4 * q}, v{vG}")
        a(f"v_xor_b32 v{vT3}, v{vT3}, v{vT2}")
        a(f"v_lshl_add_u32 v{vVaX+q}, v{vT3}, 4, v{vT1}")
    a(f"v_bfe_u32 v{vT1}, v{vL}, 2, 2")
    a(f"v_and_b32 v{vT2}, 1, v{vG}")
    a(f"v_lshl_add_u32 v{vT2}, v{vT2}, 2, v{vT1}")
    a(f"v_lshl_add_u32 v{vT1}, v{vG}, 3, v{vT1}")
    a(f"v_lshlrev_b32 v{vT1}, 8, v{vT1}")
    a(f"v_and_b32 v{vT3}, 3, v{vL}")
    a(f"v_lshl_add_u32 v{vT1}, v{vT3}, 3, v{vT1}")
    a(f"v_add_u32 v{vT1}, {XB}, v{vT1}")
    for j in range(NT):
        a(f"v_xor_b32 v{vVaW+j}, {j}, v{vT2}")
        a(f"v_lshl_add_u32 v{vVaW+j}, v{vVaW+j}, 5, v{vT1}")
    a(f"v_lshl_add_u32 v{vBiasOff}, v{vG}, 3, s{sT0}")
    a(f"v_mul_u32_u24 v{vT1}, {16 * MB}, v{vT0}")
    a(f"v_add_u32 v{vEw}, v{vT1}, v{vI16}")
    a(f"v_lshlrev_b32 v{vEw}, 8, v{vEw}")
    a(f"v_and_b32 v{vT2}, 1, v{vG}")
    a(f"v_lshl_add_u32 v{vEw}, v{vT2}, 3, v{vEw}")
    a(f"v_lshrrev_b32 v{vT2}, 1, v{vG}")
    a(f"v_xor_b32 v{vTl}, v{vT2}, v{vI16}")
    a(f"v_add_u32 v{vEr}, v{vT1}, v{vG}")
    a(f"v_lshlrev_b32 v{vEr}, 8, v{vEr}")
    a(f"v_xor_b32 v{vT2l}, v{vI16}, v{vG}")
    a(f"v_add3_u32 v{vT1}, v{vT1}, v{vG}, s{sM0}")
    a(f"v_mul_u32_u24 v{vOffS}, {pO}, v{vT1}")
    a(f"v_lshl_add_u32 v{vT2}, v{vI16}, 4, s{sT0}")
    a(f"v_add_u32 v{vOffS}, v{vOffS}, v{vT2}")
    a(f"s_mov_b32 s{sT1}, {pW}")
    a(f"v_lshrrev_b32 v{vT2}, 1, v{vL}")
    a(f"v_lshl_add_u32 v{vT2}, v{vT0}, 4, v{vT2}")
    a(f"v_mul_lo_u32 v{vT2}, v{vT2}, s{sT1}")
    a(f"v_and_b32 v{vT3}, 1, v{vL}")
    a(f"v_lshl_add_u32 v{vT3}, v{vT3}, 7, s{sT0}")
    a(f"v_add_u32 v{vT2}, v{vT2}, v{vT3}")
    a(f"v_mul_u32_u24 v{vT1}, {16 * MB}, v{vT0}")
    a(f"v_add3_u32 v{vT1}, v{vT1}, v{vL}, s{sM0}")
    a(f"v_subrev_u32 v{vT1}, 32, v{vT1}")
    a(f"v_mul_u32_u24 v{vT1}, {pA}, v{vT1}")
    a(f"v_cmp_gt_u32 vcc, 32, v{vL}")
    a("s_nop 1")
    a(f"v_cndmask_b32 v{vTouch}, v{vT1}, v{vT2}, vcc")
    a(f"s_lshl_b32 s{sWaveW}, s{sWaveX}, {(16 * RB).bit_length() - 1}")
    a(f"s_add_u32 s{sWaveW}, s{sWaveW}, {XB}")
    a(f"s_mul_i32 s{sWaveX}, s{sWaveX}, {2048 * MB}")
    a("s_waitcnt lgkmcnt(0)")
    for sr, nb in ((sA, cfg["bytesA"]), (sW, cfg["bytesW"]), (sB, cfg["bytesB"]), (sO, cfg["bytesO"])):
        a(f"s_mov_b32 s{sr+2}, {nb}")
        a(f"s_mov_b32 s{sr+3}, 0x00020000")
    vm = VmSim()
    a(f"s_cmp_ge_u32 s{sWaveId}, 4")
    a(f"s_cbranch_scc1 L_{name}_loader")
    for j in range(NT):
        a(f"buffer_load_dwordx2 v[{vBias+2*j}:{vBias+2*j+1}], v{vBiasOff}, s[{sB}:{sB+3}], 0 offen offset:{32*j}")
        vm.issue("bias")

    def issue_stage(s):
        slot = s % Dslots
        for t in range(NDW):
            a(f"s_add_u32 m0, s{sWaveW}, {slot * SLOT + t * 1024}")
            a("s_nop 0")
            if 'nodma' not in DBG:
                a(f"buffer_load_dwordx4 v{vOffW+t}, s[{sW}:{sW+3}], s{sKW} offen lds")
            vm.issue(("dma", s))
        for t in range(NDX):
            a(f"s_add_u32 m0, s{sWaveX}, {slot * SLOT + t * 1024}")
            a("s_nop 0")
            if 'nox' not in DBG:
                a(f"buffer_load_dwordx4 v{vOffX+t}, s[{sA}:{sA+3}], s{sKX} offen lds")
            vm.issue(("dma", s))
        if s + 1 < NS:
            a(f"s_add_u32 s{sKW}, s{sKW}, {64 * pW}")
            a(f"s_add_u32 s{sKX}, s{sKX}, 128")
            a(f"s_cmp_ge_u32 s{sKX}, {128 * NS}")
            a(f"s_cselect_b32 s{sT0}, {64 * pW * NS}, 0")
            a(f"s_cselect_b32 s{sT1}, {128 * NS}, 0")
            a(f"s_sub_u32 s{sKW}, s{sKW}, s{sT0}")
            a(f"s_sub_u32 s{sKX}, s{sKX}, s{sT1}")

    def issue_touch(s):
        if s >= NS or 'notouch' in DBG:
            return
        nxl = min(32, 16 * MB)
        a(f"s_mov_b32 s{sSoff}, {s * 64 * pW}")
        a("s_mov_b32 exec_hi, 0")
        a(f"buffer_load_dword v{vTouch+1}, v{vTouch}, s[{sW}:{sW+3}], s{sSoff} offen")
        a(f"s_mov_b32 s{sSoff}, {s * 128}")
        a("s_mov_b32 exec_lo, 0")
        a(f"s_mov_b32 exec_hi, {(1 << nxl) - 1:#x}")
        a(f"buffer_load_dword v{vTouch+1}, v{vTouch}, s[{sA}:{sA+3}], s{sSoff} offen")
        a("s_mov_b64 exec, -1")
        vm.issue(("touch", s), 2)

    def rd_list(u):
        q = u % 2
        buf = u & 1
        out = []
        for mb in range(MB):
            r = xf(buf, mb)
            out.append(f"ds_read_b128 v[{r}:{r+3}], v{vVaX+q} offset:{2048*mb}")
        for j in range(NT):
            for h in range(2):
                r = wf(buf, j) + 2 * h
                out.append(f"ds_read_b64_tr_b16 v[{r}:{r+1}], v{vVaW+j} offset:{8192*q+1024*h}")
        return [] if 'notr' in DBG else out

    a("s_waitcnt vmcnt(0)")
    for j in range(NT):
        for mb in range(MB):
            r = acc(mb, j)
            a(f"v_lshlrev_b32 v{r}, 16, v{vBias+2*j}")
            a(f"v_and_b32 v{r+1}, 0xffff0000, v{vBias+2*j}")
            a(f"v_lshlrev_b32 v{r+2}, 16, v{vBias+2*j+1}")
            a(f"v_and_b32 v{r+3}, 0xffff0000, v{vBias+2*j+1}")
    a("s_barrier")
    stamp()
    for ins in rd_list(0):
        a(ins)
    cur_slot = 0
    for u in range(2 * NS):
        s, q = u // 2, u % 2
        has_next = u + 1 < 2 * NS
        if has_next and q == 1:
            if 'nobar' not in DBG:
                a("s_barrier")
            stamp()
            nslot = (s + 1) % Dslots
            delta = (nslot - cur_slot) * SLOT
            cur_slot = nslot
            for r in [vVaX, vVaX + 1] + [vVaW + j for j in range(NT)]:
                a(f"v_add_u32 v{r}, {delta & 0xffffffff:#x}, v{r}")
        a("s_waitcnt lgkmcnt(0)")
        rds = rd_list(u + 1) if has_next else []
        nm = MB * NT
        for mb in range(MB):
            for j in range(NT):
                r = acc(mb, j)
                x = xf(u & 1, mb)
                b = wf(u & 1, j)
                if 'nomfma' not in DBG:
                    a(f"v_mfma_f32_16x16x32_bf16 v[{r}:{r+3}], v[{b}:{b+3}], v[{x}:{x+3}], v[{r}:{r+3}]")
                k = (len(rds) + nm - 1) // nm
                nm -= 1
                for ins in rds[:k]:
                    a(ins)
                rds = rds[k:]
    a("s_barrier")
    stamp()
    a("s_nop 7")
    for j in range(NT):
        a(f"v_xor_b32 v{vT1}, {2 * j}, v{vTl}")
        a(f"v_lshl_add_u32 v{vT1}, v{vT1}, 4, v{vEw}")
        for mb in range(MB):
            r = acc(mb, j)
            if cfg["epilogue"] == "relu2":
                for e in range(4):
                    a(f"v_max_f32 v{r+e}, 0, v{r+e}")
                for e in range(4):
                    a(f"v_mul_f32 v{r+e}, v{r+e}, v{r+e}")
            a(f"v_cvt_pk_bf16_f32 v{r}, v{r}, v{r+1}")
            a(f"v_cvt_pk_bf16_f32 v{r+1}, v{r+2}, v{r+3}")
            a(f"ds_write_b64 v{vT1}, v[{r}:{r+1}] offset:{4096*mb}")
    a("s_waitcnt lgkmcnt(0)")
    NR = 4 * MB
    for i in range(NR):
        a(f"v_xor_b32 v{vT1}, {4 * (i & 3)}, v{vT2l}")
        a(f"v_lshl_add_u32 v{vT1}, v{vT1}, 4, v{vEr}")
        r = vWf + 4 * i
        a(f"ds_read_b128 v[{r}:{r+3}], v{vT1} offset:{1024*i}")
    if cfg.get("ragged_nt") is not None:
        a(f"s_cmp_eq_u32 s{sNt}, {cfg['ragged_nt'][0]}")
        a(f"s_cselect_b32 s{sT0}, 0x00ff00ff, -1")
        a(f"s_mov_b32 exec_lo, s{sT0}")
        a(f"s_mov_b32 exec_hi, s{sT0}")
    for i in range(NR):
        r = vWf + 4 * i
        a(f"s_mov_b32 s{sSoff}, {4 * i * pO}")
        a(f"s_waitcnt lgkmcnt({NR - 1 - i})")
        if 'nostore' not in DBG:
            a(f"buffer_store_dwordx4 v[{r}:{r+3}], v{vOffS}, s[{sO}:{sO+3}], s{sSoff} offen")
    if STAMP:
        stamp()
        a("s_mov_b64 exec, -1")
        a("s_waitcnt lgkmcnt(0) vmcnt(0)")
        a(f"s_load_dwordx2 s[{sB}:{sB+1}], s[0:1], 56")
        a("s_waitcnt lgkmcnt(0)")
        a(f"s_mov_b32 s{sB+2}, 0x7fffffff")
        a(f"s_lshl_b32 s{sT0}, s2, 9")
        a(f"s_add_u32 s{sT0}, s{sT0}, {16 << 20}")
        a(f"v_cmp_eq_u32 vcc, 0, v{vTid}")
        a(f"s_and_saveexec_b64 s[36:37], vcc")
        a(f"v_mov_b32 v{vT1}, s{sT0}")
        for i, r in enumerate(stamps):
            a(f"v_mov_b32 v{vT2}, s{r}")
            a(f"v_mov_b32 v{vT3}, s{r+1}")
            a(f"buffer_store_dwordx2 v[{vT2}:{vT3}], v{vT1}, s[{sB}:{sB+3}], 0 offen offset:{8*i}")
            a("s_nop 1")
    a("s_endpgm")
    a.label(f"L_{name}_loader")
    vm = VmSim()
    for s in range(min(P0, NS)):
        issue_stage(s)
    nxt = min(P0, NS)
    for s in range(NS):
        a(f"s_waitcnt vmcnt({vm.count_after(('dma', s))})")
        a("s_barrier")
        while nxt < NS and nxt <= s + P:
            issue_stage(nxt)
            nxt += 1
    a.label(f"L_{name}_end")
    a("s_endpgm")
    accum = (nV + 3) // 4 * 4
    kd = f""".section .rodata,"a"
.p2align 6
.amdhsa_kernel {name}
  .amdhsa_next_free_vgpr {accum}
  .amdhsa_next_free_sgpr 102
  .amdhsa_accum_offset {accum}
  .amdhsa_group_segment_fixed_size 0
  .amdhsa_kernarg_size 64
  .amdhsa_user_sgpr_count 2
  .amdhsa_user_sgpr_kernarg_segment_ptr 1
  .amdhsa_system_sgpr_workgroup_id_x 1
.end_amdhsa_kernel
.text
"""
    a.lines.append(kd)
    return Dslots * SLOT


def tilemap_k1(a, sMt, sNt, sT0, sT1):
    a(f"s_and_b32 s{sT0}, s2, 7")
    a(f"s_lshr_b32 s{sT1}, s2, 3")
    a(f"s_mul_i32 s{sMt}, s{sT1}, 37")
    a(f"s_lshr_b32 s{sMt}, s{sMt}, 8")
    a(f"s_mul_i32 s{sNt}, s{sMt}, 7")
    a(f"s_sub_u32 s{sNt}, s{sT1}, s{sNt}")
    a(f"s_lshr_b32 s{sT1}, s{sT0}, 1")
    a(f"s_lshl_b32 s{sT1}, s{sT1}, 2")
    a(f"s_add_u32 s{sMt}, s{sMt}, s{sT1}")
    a(f"s_and_b32 s{sT0}, s{sT0}, 1")
    a(f"s_mul_i32 s{sT0}, s{sT0}, 7")
    a(f"s_add_u32 s{sNt}, s{sNt}, s{sT0}")


def tilemap_k2a(a, sMt, sNt, sT0, sT1):
    a(f"s_and_b32 s{sT0}, s2, 7")
    a(f"s_lshr_b32 s{sT1}, s2, 3")
    a(f"s_mul_i32 s{sMt}, s{sT1}, 52")
    a(f"s_lshr_b32 s{sMt}, s{sMt}, 8")
    a(f"s_mul_i32 s{sNt}, s{sMt}, 5")
    a(f"s_sub_u32 s{sNt}, s{sT1}, s{sNt}")
    a(f"s_lshl_b32 s{sT0}, s{sT0}, 2")
    a(f"s_add_u32 s{sMt}, s{sMt}, s{sT0}")


HEADER = """; Kernarg layout for this problem (64 bytes, ptrs only, base s[0:1]):
"""


def main():
    out = sys.argv[1] if len(sys.argv) > 1 else "standalone__dense_activation_squared_relu__prompt.s"
    a = Asm()
    P1 = int(os.environ.get("P1", "3")); D1 = int(os.environ.get("D1", "5"))
    P2 = int(os.environ.get("P2", "4")); D2 = int(os.environ.get("D2", "6"))
    k1 = dict(name="ffn1_kernel", NWG=224, MB=2, NT=8, K=640, T=int(os.environ.get("T1", "7")), pitchA=1280, pitchW=3456, pitchO=3456,
              argA=0, argW=8, argB=16, argO=56,
              bytesA=S_ * D_ * 2, bytesW=D_ * F_ * 2, bytesB=F_ * 2, bytesO=S_ * F_ * 2,
              tilemap=tilemap_k1, epilogue="relu2", P=P1, D=D1, ragged_nt=(13, 4))
    k2 = dict(name="ffn2_kernel", NWG=160, MB=1, NT=8, K=1728, T=int(os.environ.get("T2", "12")), pitchA=3456, pitchW=1280, pitchO=1280,
              argA=56, argW=24, argB=32, argO=40,
              bytesA=S_ * F_ * 2, bytesW=F_ * D_ * 2, bytesB=D_ * 2, bytesO=S_ * D_ * 2,
              tilemap=tilemap_k2a, epilogue="bias", P=P2, D=D2, ragged_nt=None)
    lds1 = gen_gemm(a, k1)
    lds2 = gen_gemm(a, k2)
    hdr = HEADER
    hdr += f"; @launch kernel=ffn1_kernel grid=({k1['NWG']},1,1) block=(512,1,1) lds={lds1}\n"
    hdr += f"; @launch kernel=ffn2_kernel grid=({k2['NWG']},1,1) block=(512,1,1) lds={lds2}\n"
    hdr += '.amdgcn_target "amdgcn-amd-amdhsa--gfx950"\n.text\n'
    open(out, "w").write(hdr + a.text())
    print("wrote", out, "lds", lds1, lds2)


if __name__ == "__main__":
    main()
```

```python
import sys, os
DBG = set(os.environ.get('GEN_DBG', '').split(','))

S_, D_, F_ = 2048, 640, 1728


class Asm:
    def __init__(self):
        self.lines = []

    def __call__(self, s):
        self.lines.append("    " + s)

    def label(self, s):
        self.lines.append(s + ":")

    def comment(self, s):
        self.lines.append("    ; " + s)

    def text(self):
        return "\n".join(self.lines) + "\n"


class VmSim:
    def __init__(self):
        self.ops = []

    def issue(self, tag, n=1):
        self.ops += [tag] * n

    def count_after(self, tag):
        last = max(i for i, t in enumerate(self.ops) if t == tag)
        return len(self.ops) - 1 - last


def gen_gemm(a, cfg):
    name = cfg["name"]
    MB, NT, K = cfg["MB"], cfg["NT"], cfg["K"]
    pA, pW, pO = cfg["pitchA"], cfg["pitchW"], cfg["pitchO"]
    P, Dslots = cfg["P"], cfg["D"]
    P0 = cfg.get('P0', 2)
    assert NT == 8
    RB = 32 * NT
    XB = 64 * MB * 128
    WB = 64 * RB
    SLOT = XB + WB
    NS = K // 64
    assert K % 64 == 0
    assert Dslots >= min(NS, P + 2)
    NDX = 2 * MB
    NDW = RB // 64
    vTid = 0
    vL, vG, vI16, vT0, vT1, vT2, vT3 = 1, 2, 3, 4, 5, 6, 7
    vOffX = 8
    vOffW = 12
    vVaX = 16
    vVaW = 18
    vOffS = 26
    vEw = 27
    vEr = 28
    vTl = 29
    vT2l = 30
    vBiasOff = 31
    vTouch = 48
    TD = cfg.get('T', 0)
    vBias = 32
    vAcc = 52
    vWf = vAcc + MB * NT * 4
    vXf = vWf + 2 * NT * 4
    nV = vXf + 2 * MB * 4

    def acc(mb, j):
        return vAcc + (mb * NT + j) * 4

    def wf(buf, j):
        return vWf + (buf * NT + j) * 4

    def xf(buf, mb):
        return vXf + (buf * MB + mb) * 4

    sA, sW, sB, sO = 4, 8, 12, 16
    sWaveX, sWaveW, sM0, sN0, sT0, sT1, sMt, sNt, sSoff = 20, 21, 22, 23, 24, 25, 26, 27, 28
    sKW, sKX, sRot, sWaveId = 29, 30, 31, 32
    STAMP = 'stamp' in DBG
    stamps = []

    def stamp():
        if STAMP:
            r = 40 + 2 * len(stamps)
            stamps.append(r)
            a(f"s_memtime s[{r}:{r+1}]")

    a.lines.append(f".globl {name}")
    a.lines.append(".p2align 8")
    a.lines.append(f".type {name},@function")
    a.label(name)
    a(f"s_cmp_ge_u32 s2, {cfg['NWG']}")
    a(f"s_cbranch_scc1 L_{name}_end")
    stamp()
    a(f"s_load_dwordx2 s[{sA}:{sA+1}], s[0:1], {cfg['argA']}")
    a(f"s_load_dwordx2 s[{sW}:{sW+1}], s[0:1], {cfg['argW']}")
    a(f"s_load_dwordx2 s[{sB}:{sB+1}], s[0:1], {cfg['argB']}")
    a(f"s_load_dwordx2 s[{sO}:{sO+1}], s[0:1], {cfg['argO']}")
    cfg["tilemap"](a, sMt, sNt, sT0, sT1)
    if cfg.get("ROT", 1):
        a(f"s_lshr_b32 s{sRot}, s2, 3")
        a(f"s_mul_i32 s{sRot}, s{sRot}, {cfg.get('ROTMUL', 1)}")
        for _ in range(cfg.get('ROTRED', 3)):
            a(f"s_cmp_ge_u32 s{sRot}, {NS}")
            a(f"s_cselect_b32 s{sT0}, {NS}, 0")
            a(f"s_sub_u32 s{sRot}, s{sRot}, s{sT0}")
    else:
        a(f"s_mov_b32 s{sRot}, 0")
    a(f"s_mul_i32 s{sKW}, s{sRot}, {64 * pW}")
    a(f"s_lshl_b32 s{sKX}, s{sRot}, 7")
    a(f"s_mul_i32 s{sM0}, s{sMt}, {64 * MB}")
    a(f"s_mul_i32 s{sN0}, s{sNt}, {16 * NT}")
    a(f"v_and_b32 v{vL}, 63, v{vTid}")
    a(f"v_lshrrev_b32 v{vG}, 4, v{vL}")
    a(f"v_and_b32 v{vI16}, 15, v{vL}")
    a(f"v_lshrrev_b32 v{vT0}, 6, v{vTid}")
    a("s_nop 1")
    a(f"v_readfirstlane_b32 s{sWaveId}, v{vT0}")
    a(f"v_and_b32 v{vT0}, 3, v{vT0}")
    a(f"s_and_b32 s{sWaveX}, s{sWaveId}, 3")
    a(f"s_lshl_b32 s{sT0}, s{sN0}, 1")
    a(f"s_mov_b32 s{sT1}, {pA}")
    a(f"v_mul_u32_u24 v{vT1}, {16 * MB}, v{vT0}")
    a(f"v_lshrrev_b32 v{vT2}, 3, v{vL}")
    a(f"v_add3_u32 v{vT1}, v{vT1}, v{vT2}, s{sM0}")
    a(f"v_and_b32 v{vT2}, 7, v{vL}")
    for t in range(NDX):
        a(f"v_xor_b32 v{vT3}, {(4 * t) & 7}, v{vG}")
        a(f"v_xor_b32 v{vT3}, v{vT3}, v{vT2}")
        a(f"v_add_u32 v{vOffX+t}, {8 * t}, v{vT1}")
        a(f"v_mul_lo_u32 v{vOffX+t}, v{vOffX+t}, s{sT1}")
        a(f"v_lshl_add_u32 v{vOffX+t}, v{vT3}, 4, v{vOffX+t}")
    a(f"s_mov_b32 s{sT1}, {pW}")
    a(f"v_lshl_add_u32 v{vT1}, v{vT0}, 4, v{vG}")
    for t in range(NDW):
        a(f"v_lshlrev_b32 v{vT3}, 1, v{vG}")
        a(f"v_xor_b32 v{vT3}, v{vT3}, v{vI16}")
        if (t >> 1) & 1:
            a(f"v_xor_b32 v{vT3}, 8, v{vT3}")
        a(f"v_add_u32 v{vOffW+t}, {4 * t}, v{vT1}")
        a(f"v_mul_lo_u32 v{vOffW+t}, v{vOffW+t}, s{sT1}")
        a(f"v_lshl_add_u32 v{vT3}, v{vT3}, 4, s{sT0}")
        a(f"v_add_u32 v{vOffW+t}, v{vOffW+t}, v{vT3}")
    a(f"v_lshrrev_b32 v{vT2}, 1, v{vI16}")
    a(f"v_mul_u32_u24 v{vT1}, {2048 * MB}, v{vT0}")
    a(f"v_lshl_add_u32 v{vT1}, v{vI16}, 7, v{vT1}")
    for q in range(2):
        a(f"v_xor_b32 v{vT3}, {4 * q}, v{vG}")
        a(f"v_xor_b32 v{vT3}, v{vT3}, v{vT2}")
        a(f"v_lshl_add_u32 v{vVaX+q}, v{vT3}, 4, v{vT1}")
    a(f"v_bfe_u32 v{vT1}, v{vL}, 2, 2")
    a(f"v_and_b32 v{vT2}, 1, v{vG}")
    a(f"v_lshl_add_u32 v{vT2}, v{vT2}, 2, v{vT1}")
    a(f"v_lshl_add_u32 v{vT1}, v{vG}, 3, v{vT1}")
    a(f"v_lshlrev_b32 v{vT1}, 8, v{vT1}")
    a(f"v_and_b32 v{vT3}, 3, v{vL}")
    a(f"v_lshl_add_u32 v{vT1}, v{vT3}, 3, v{vT1}")
    a(f"v_add_u32 v{vT1}, {XB}, v{vT1}")
    for j in range(NT):
        a(f"v_xor_b32 v{vVaW+j}, {j}, v{vT2}")
        a(f"v_lshl_add_u32 v{vVaW+j}, v{vVaW+j}, 5, v{vT1}")
    a(f"v_lshl_add_u32 v{vBiasOff}, v{vG}, 3, s{sT0}")
    a(f"v_mul_u32_u24 v{vT1}, {16 * MB}, v{vT0}")
    a(f"v_add_u32 v{vEw}, v{vT1}, v{vI16}")
    a(f"v_lshlrev_b32 v{vEw}, 8, v{vEw}")
    a(f"v_and_b32 v{vT2}, 1, v{vG}")
    a(f"v_lshl_add_u32 v{vEw}, v{vT2}, 3, v{vEw}")
    a(f"v_lshrrev_b32 v{vT2}, 1, v{vG}")
    a(f"v_xor_b32 v{vTl}, v{vT2}, v{vI16}")
    a(f"v_add_u32 v{vEr}, v{vT1}, v{vG}")
    a(f"v_lshlrev_b32 v{vEr}, 8, v{vEr}")
    a(f"v_xor_b32 v{vT2l}, v{vI16}, v{vG}")
    a(f"v_add3_u32 v{vT1}, v{vT1}, v{vG}, s{sM0}")
    a(f"v_mul_u32_u24 v{vOffS}, {pO}, v{vT1}")
    a(f"v_lshl_add_u32 v{vT2}, v{vI16}, 4, s{sT0}")
    a(f"v_add_u32 v{vOffS}, v{vOffS}, v{vT2}")
    a(f"s_mov_b32 s{sT1}, {pW}")
    a(f"v_lshrrev_b32 v{vT2}, 1, v{vL}")
    a(f"v_lshl_add_u32 v{vT2}, v{vT0}, 4, v{vT2}")
    a(f"v_mul_lo_u32 v{vT2}, v{vT2}, s{sT1}")
    a(f"v_and_b32 v{vT3}, 1, v{vL}")
    a(f"v_lshl_add_u32 v{vT3}, v{vT3}, 7, s{sT0}")
    a(f"v_add_u32 v{vT2}, v{vT2}, v{vT3}")
    a(f"v_mul_u32_u24 v{vT1}, {16 * MB}, v{vT0}")
    a(f"v_add3_u32 v{vT1}, v{vT1}, v{vL}, s{sM0}")
    a(f"v_subrev_u32 v{vT1}, 32, v{vT1}")
    a(f"v_mul_u32_u24 v{vT1}, {pA}, v{vT1}")
    a(f"v_cmp_gt_u32 vcc, 32, v{vL}")
    a("s_nop 1")
    a(f"v_cndmask_b32 v{vTouch}, v{vT1}, v{vT2}, vcc")
    a(f"s_lshl_b32 s{sWaveW}, s{sWaveX}, {(16 * RB).bit_length() - 1}")
    a(f"s_add_u32 s{sWaveW}, s{sWaveW}, {XB}")
    a(f"s_mul_i32 s{sWaveX}, s{sWaveX}, {2048 * MB}")
    a("s_waitcnt lgkmcnt(0)")
    for sr, nb in ((sA, cfg["bytesA"]), (sW, cfg["bytesW"]), (sB, cfg["bytesB"]), (sO, cfg["bytesO"])):
        a(f"s_mov_b32 s{sr+2}, {nb}")
        a(f"s_mov_b32 s{sr+3}, 0x00020000")
    vm = VmSim()
    a(f"s_cmp_ge_u32 s{sWaveId}, 4")
    a(f"s_cbranch_scc1 L_{name}_loader")
    for j in range(NT):
        a(f"buffer_load_dwordx2 v[{vBias+2*j}:{vBias+2*j+1}], v{vBiasOff}, s[{sB}:{sB+3}], 0 offen offset:{32*j}")
        vm.issue("bias")

    def issue_stage(s):
        slot = s % Dslots
        for t in range(NDW):
            a(f"s_add_u32 m0, s{sWaveW}, {slot * SLOT + t * 1024}")
            a("s_nop 0")
            if 'nodma' not in DBG:
                a(f"buffer_load_dwordx4 v{vOffW+t}, s[{sW}:{sW+3}], s{sKW} offen lds")
            vm.issue(("dma", s))
        for t in range(NDX):
            a(f"s_add_u32 m0, s{sWaveX}, {slot * SLOT + t * 1024}")
            a("s_nop 0")
            if 'nox' not in DBG:
                a(f"buffer_load_dwordx4 v{vOffX+t}, s[{sA}:{sA+3}], s{sKX} offen lds")
            vm.issue(("dma", s))
        if s + 1 < NS:
            a(f"s_add_u32 s{sKW}, s{sKW}, {64 * pW}")
            a(f"s_add_u32 s{sKX}, s{sKX}, 128")
            a(f"s_cmp_ge_u32 s{sKX}, {128 * NS}")
            a(f"s_cselect_b32 s{sT0}, {64 * pW * NS}, 0")
            a(f"s_cselect_b32 s{sT1}, {128 * NS}, 0")
            a(f"s_sub_u32 s{sKW}, s{sKW}, s{sT0}")
            a(f"s_sub_u32 s{sKX}, s{sKX}, s{sT1}")

    def issue_touch(s):
        if s >= NS or 'notouch' in DBG:
            return
        nxl = min(32, 16 * MB)
        a(f"s_mov_b32 s{sSoff}, {s * 64 * pW}")
        a("s_mov_b32 exec_hi, 0")
        a(f"buffer_load_dword v{vTouch+1}, v{vTouch}, s[{sW}:{sW+3}], s{sSoff} offen")
        a(f"s_mov_b32 s{sSoff}, {s * 128}")
        a("s_mov_b32 exec_lo, 0")
        a(f"s_mov_b32 exec_hi, {(1 << nxl) - 1:#x}")
        a(f"buffer_load_dword v{vTouch+1}, v{vTouch}, s[{sA}:{sA+3}], s{sSoff} offen")
        a("s_mov_b64 exec, -1")
        vm.issue(("touch", s), 2)

    def rd_list(u):
        q = u % 2
        buf = u & 1
        out = []
        for mb in range(MB):
            r = xf(buf, mb)
            out.append(f"ds_read_b128 v[{r}:{r+3}], v{vVaX+q} offset:{2048*mb}")
        for j in range(NT):
            for h in range(2):
                r = wf(buf, j) + 2 * h
                out.append(f"ds_read_b64_tr_b16 v[{r}:{r+1}], v{vVaW+j} offset:{8192*q+1024*h}")
        return [] if 'notr' in DBG else out

    a("s_waitcnt vmcnt(0)")
    for j in range(NT):
        for mb in range(MB):
            r = acc(mb, j)
            a(f"v_lshlrev_b32 v{r}, 16, v{vBias+2*j}")
            a(f"v_and_b32 v{r+1}, 0xffff0000, v{vBias+2*j}")
            a(f"v_lshlrev_b32 v{r+2}, 16, v{vBias+2*j+1}")
            a(f"v_and_b32 v{r+3}, 0xffff0000, v{vBias+2*j+1}")
    a("s_barrier")
    stamp()
    for ins in rd_list(0):
        a(ins)
    cur_slot = 0
    for u in range(2 * NS):
        s, q = u // 2, u % 2
        has_next = u + 1 < 2 * NS
        if has_next and q == 1:
            if 'nobar' not in DBG:
                a("s_barrier")
            stamp()
            nslot = (s + 1) % Dslots
            delta = (nslot - cur_slot) * SLOT
            cur_slot = nslot
            for r in [vVaX, vVaX + 1] + [vVaW + j for j in range(NT)]:
                a(f"v_add_u32 v{r}, {delta & 0xffffffff:#x}, v{r}")
        a("s_waitcnt lgkmcnt(0)")
        rds = rd_list(u + 1) if has_next else []
        nm = MB * NT
        for mb in range(MB):
            for j in range(NT):
                r = acc(mb, j)
                x = xf(u & 1, mb)
                b = wf(u & 1, j)
                if 'nomfma' not in DBG:
                    a(f"v_mfma_f32_16x16x32_bf16 v[{r}:{r+3}], v[{b}:{b+3}], v[{x}:{x+3}], v[{r}:{r+3}]")
                k = (len(rds) + nm - 1) // nm
                nm -= 1
                for ins in rds[:k]:
                    a(ins)
                rds = rds[k:]
    a("s_barrier")
    stamp()
    a("s_nop 7")
    for j in range(NT):
        a(f"v_xor_b32 v{vT1}, {2 * j}, v{vTl}")
        a(f"v_lshl_add_u32 v{vT1}, v{vT1}, 4, v{vEw}")
        for mb in range(MB):
            r = acc(mb, j)
            if cfg["epilogue"] == "relu2":
                for e in range(4):
                    a(f"v_max_f32 v{r+e}, 0, v{r+e}")
                for e in range(4):
                    a(f"v_mul_f32 v{r+e}, v{r+e}, v{r+e}")
            a(f"v_cvt_pk_bf16_f32 v{r}, v{r}, v{r+1}")
            a(f"v_cvt_pk_bf16_f32 v{r+1}, v{r+2}, v{r+3}")
            a(f"ds_write_b64 v{vT1}, v[{r}:{r+1}] offset:{4096*mb}")
    a("s_waitcnt lgkmcnt(0)")
    NR = 4 * MB
    for i in range(NR):
        a(f"v_xor_b32 v{vT1}, {4 * (i & 3)}, v{vT2l}")
        a(f"v_lshl_add_u32 v{vT1}, v{vT1}, 4, v{vEr}")
        r = vWf + 4 * i
        a(f"ds_read_b128 v[{r}:{r+3}], v{vT1} offset:{1024*i}")
    if cfg.get("ragged_nt") is not None:
        a(f"s_cmp_eq_u32 s{sNt}, {cfg['ragged_nt'][0]}")
        a(f"s_cselect_b32 s{sT0}, 0x00ff00ff, -1")
        a(f"s_mov_b32 exec_lo, s{sT0}")
        a(f"s_mov_b32 exec_hi, s{sT0}")
    for i in range(NR):
        r = vWf + 4 * i
        a(f"s_mov_b32 s{sSoff}, {4 * i * pO}")
        a(f"s_waitcnt lgkmcnt({NR - 1 - i})")
        if 'nostore' not in DBG:
            a(f"buffer_store_dwordx4 v[{r}:{r+3}], v{vOffS}, s[{sO}:{sO+3}], s{sSoff} offen")
    if STAMP:
        stamp()
        a("s_mov_b64 exec, -1")
        a("s_waitcnt lgkmcnt(0) vmcnt(0)")
        a(f"s_load_dwordx2 s[{sB}:{sB+1}], s[0:1], 56")
        a("s_waitcnt lgkmcnt(0)")
        a(f"s_mov_b32 s{sB+2}, 0x7fffffff")
        a(f"s_lshl_b32 s{sT0}, s2, 9")
        a(f"s_add_u32 s{sT0}, s{sT0}, {16 << 20}")
        a(f"v_cmp_eq_u32 vcc, 0, v{vTid}")
        a(f"s_and_saveexec_b64 s[36:37], vcc")
        a(f"v_mov_b32 v{vT1}, s{sT0}")
        for i, r in enumerate(stamps):
            a(f"v_mov_b32 v{vT2}, s{r}")
            a(f"v_mov_b32 v{vT3}, s{r+1}")
            a(f"buffer_store_dwordx2 v[{vT2}:{vT3}], v{vT1}, s[{sB}:{sB+3}], 0 offen offset:{8*i}")
            a("s_nop 1")
    if 'padS' in DBG and name == 'ffn1_kernel':
        for _ in range(4000):
            a("s_nop 0")
    if 'padL' in DBG and name == 'ffn1_kernel':
        a("s_mov_b32 s33, 0")
        a.label("L_padloop")
        for _ in range(100):
            a("s_nop 0")
        a("s_add_u32 s33, s33, 1")
        a("s_cmp_lt_u32 s33, 40")
        a("s_cbranch_scc1 L_padloop")
    a("s_endpgm")
    a.label(f"L_{name}_loader")
    vm = VmSim()
    for s in range(min(P0, NS)):
        issue_stage(s)
    nxt = min(P0, NS)
    for s in range(NS):
        a(f"s_waitcnt vmcnt({vm.count_after(('dma', s))})")
        a("s_barrier")
        while nxt < NS and nxt <= s + P:
            issue_stage(nxt)
            nxt += 1
    a.label(f"L_{name}_end")
    a("s_endpgm")
    accum = (nV + 3) // 4 * 4
    kd = f""".section .rodata,"a"
.p2align 6
.amdhsa_kernel {name}
  .amdhsa_next_free_vgpr {accum}
  .amdhsa_next_free_sgpr 102
  .amdhsa_accum_offset {accum}
  .amdhsa_group_segment_fixed_size 0
  .amdhsa_kernarg_size 64
  .amdhsa_user_sgpr_count 2
  .amdhsa_user_sgpr_kernarg_segment_ptr 1
  .amdhsa_system_sgpr_workgroup_id_x 1
.end_amdhsa_kernel
.text
"""
    a.lines.append(kd)
    return Dslots * SLOT


def tilemap_k1(a, sMt, sNt, sT0, sT1):
    a(f"s_and_b32 s{sT0}, s2, 7")
    a(f"s_lshr_b32 s{sT1}, s2, 3")
    a(f"s_mul_i32 s{sMt}, s{sT1}, 37")
    a(f"s_lshr_b32 s{sMt}, s{sMt}, 8")
    a(f"s_mul_i32 s{sNt}, s{sMt}, 7")
    a(f"s_sub_u32 s{sNt}, s{sT1}, s{sNt}")
    a(f"s_lshr_b32 s{sT1}, s{sT0}, 1")
    a(f"s_lshl_b32 s{sT1}, s{sT1}, 2")
    a(f"s_add_u32 s{sMt}, s{sMt}, s{sT1}")
    a(f"s_and_b32 s{sT0}, s{sT0}, 1")
    a(f"s_mul_i32 s{sT0}, s{sT0}, 7")
    a(f"s_add_u32 s{sNt}, s{sNt}, s{sT0}")


def tilemap_k2a(a, sMt, sNt, sT0, sT1):
    a(f"s_and_b32 s{sT0}, s2, 7")
    a(f"s_lshr_b32 s{sT1}, s2, 3")
    a(f"s_mul_i32 s{sMt}, s{sT1}, 52")
    a(f"s_lshr_b32 s{sMt}, s{sMt}, 8")
    a(f"s_mul_i32 s{sNt}, s{sMt}, 5")
    a(f"s_sub_u32 s{sNt}, s{sT1}, s{sNt}")
    a(f"s_lshl_b32 s{sT0}, s{sT0}, 2")
    a(f"s_add_u32 s{sMt}, s{sMt}, s{sT0}")


HEADER = """; Kernarg layout for this problem (64 bytes, ptrs only, base s[0:1]):
"""


def main():
    out = sys.argv[1] if len(sys.argv) > 1 else "standalone__dense_activation_squared_relu__prompt.s"
    a = Asm()
    P1 = int(os.environ.get("P1", "3")); D1 = int(os.environ.get("D1", "5"))
    P2 = int(os.environ.get("P2", "4")); D2 = int(os.environ.get("D2", "6"))
    k1 = dict(name="ffn1_kernel", NWG=224, MB=2, NT=8, K=640, T=int(os.environ.get("T1", "7")), pitchA=1280, pitchW=3456, pitchO=3456,
              argA=0, argW=8, argB=16, argO=56,
              bytesA=S_ * D_ * 2, bytesW=D_ * F_ * 2, bytesB=F_ * 2, bytesO=S_ * F_ * 2,
              tilemap=tilemap_k1, epilogue="relu2", P=P1, D=D1, ragged_nt=(13, 4))
    k2 = dict(name="ffn2_kernel", NWG=160, MB=1, NT=8, K=1728, T=int(os.environ.get("T2", "12")), pitchA=3456, pitchW=1280, pitchO=1280,
              argA=56, argW=24, argB=32, argO=40,
              bytesA=S_ * F_ * 2, bytesW=F_ * D_ * 2, bytesB=D_ * 2, bytesO=S_ * D_ * 2,
              tilemap=tilemap_k2a, epilogue="bias", P=P2, D=D2, ragged_nt=None)
    lds1 = gen_gemm(a, k1)
    lds2 = gen_gemm(a, k2)
    hdr = HEADER
    hdr += f"; @launch kernel=ffn1_kernel grid=({k1['NWG']},1,1) block=(512,1,1) lds={lds1}\n"
    hdr += f"; @launch kernel=ffn2_kernel grid=({k2['NWG']},1,1) block=(512,1,1) lds={lds2}\n"
    hdr += '.amdgcn_target "amdgcn-amd-amdhsa--gfx950"\n.text\n'
    open(out, "w").write(hdr + a.text())
    print("wrote", out, "lds", lds1, lds2)


if __name__ == "__main__":
    main()
```

```python
import sys, os
DBG = set(os.environ.get('GEN_DBG', '').split(','))

S_, D_, F_ = 2048, 640, 1728


class Asm:
    def __init__(self):
        self.lines = []

    def __call__(self, s):
        self.lines.append("    " + s)

    def label(self, s):
        self.lines.append(s + ":")

    def comment(self, s):
        self.lines.append("    ; " + s)

    def text(self):
        return "\n".join(self.lines) + "\n"


class VmSim:
    def __init__(self):
        self.ops = []

    def issue(self, tag, n=1):
        self.ops += [tag] * n

    def count_after(self, tag):
        last = max(i for i, t in enumerate(self.ops) if t == tag)
        return len(self.ops) - 1 - last


def gen_gemm(a, cfg):
    name = cfg["name"]
    WM, WN, MBw, NTw, K = cfg["WM"], cfg["WN"], cfg["MBw"], cfg["NTw"], cfg["K"]
    pA, pW, pO = cfg["pitchA"], cfg["pitchW"], cfg["pitchO"]
    P, Dslots = cfg["P"], cfg["D"]
    P0 = cfg.get('P0', 2)
    assert WM * WN == 4
    tM = 16 * WM * MBw
    tN = 16 * WN * NTw
    RB = 2 * tN
    assert RB in (128, 256)
    LRB = RB.bit_length() - 1
    CR = RB // 16
    LCR = CR.bit_length() - 1
    XB = tM * 128
    WB = 64 * RB
    SLOT = XB + WB
    NS = K // 64
    assert K % 64 == 0 and Dslots >= min(NS, P + 2)
    RXW = tM // 4
    assert RXW % 8 == 0
    NDX = RXW // 8
    NDW = RB // 64
    RPI = 1024 // RB
    EP = RB + 16
    NST = (RXW * CR) // 64
    assert (RXW * CR) % 64 == 0
    vTid = 0
    vL, vG, vI16, vT0, vT1, vT2, vT3 = 1, 2, 3, 4, 5, 6, 7
    vOffX = 8
    vOffW = 12
    vVaX = 16
    vVaW = 18
    vEw = 26
    vBiasOff = 27
    vEr = 28
    vOs = 29
    vWn = 30
    vBias = 32
    vAcc = 48
    vWf = vAcc + MBw * NTw * 4
    vXf = vWf + 2 * NTw * 4
    nV = max(vXf + 2 * MBw * 4, vWf + 4 * NST)

    def acc(mb, j):
        return vAcc + (mb * NTw + j) * 4

    def wf(buf, j):
        return vWf + (buf * NTw + j) * 4

    def xf(buf, mb):
        return vXf + (buf * MBw + mb) * 4

    sA, sW, sB, sO = 4, 8, 12, 16
    sWaveX, sWaveW, sM0, sN0, sT0, sT1, sMt, sNt, sSoff = 20, 21, 22, 23, 24, 25, 26, 27, 28
    sKW, sKX, sRot, sWaveId = 29, 30, 31, 32
    STAMP = 'stamp' in DBG
    stamps = []

    def stamp():
        if STAMP:
            r = 40 + 2 * len(stamps)
            stamps.append(r)
            a(f"s_memtime s[{r}:{r+1}]")

    a.lines.append(f".globl {name}")
    a.lines.append(".p2align 8")
    a.lines.append(f".type {name},@function")
    a.label(name)
    if cfg.get("PREFETCH"):
        a(f"s_cmp_ge_u32 s2, {cfg['NWG']}")
        a(f"s_cbranch_scc1 L_{name}_pf")
    else:
        a(f"s_cmp_ge_u32 s2, {cfg['NWG']}")
        a(f"s_cbranch_scc1 L_{name}_end")
    stamp()
    a(f"s_load_dwordx2 s[{sA}:{sA+1}], s[0:1], {cfg['argA']}")
    a(f"s_load_dwordx2 s[{sW}:{sW+1}], s[0:1], {cfg['argW']}")
    a(f"s_load_dwordx2 s[{sB}:{sB+1}], s[0:1], {cfg['argB']}")
    a(f"s_load_dwordx2 s[{sO}:{sO+1}], s[0:1], {cfg['argO']}")
    cfg["tilemap"](a, sMt, sNt, sT0, sT1)
    a(f"s_lshr_b32 s{sRot}, s2, 3")
    for _ in range(cfg.get('ROTRED', 3)):
        a(f"s_cmp_ge_u32 s{sRot}, {NS}")
        a(f"s_cselect_b32 s{sT0}, {NS}, 0")
        a(f"s_sub_u32 s{sRot}, s{sRot}, s{sT0}")
    a(f"s_mul_i32 s{sKW}, s{sRot}, {64 * pW}")
    a(f"s_lshl_b32 s{sKX}, s{sRot}, 7")
    a(f"s_mul_i32 s{sM0}, s{sMt}, {tM}")
    a(f"s_mul_i32 s{sN0}, s{sNt}, {tN}")
    a(f"v_and_b32 v{vL}, 63, v{vTid}")
    a(f"v_lshrrev_b32 v{vG}, 4, v{vL}")
    a(f"v_and_b32 v{vI16}, 15, v{vL}")
    a(f"v_lshrrev_b32 v{vT0}, 6, v{vTid}")
    a("s_nop 1")
    a(f"v_readfirstlane_b32 s{sWaveId}, v{vT0}")
    a(f"v_and_b32 v{vT0}, 3, v{vT0}")
    a(f"s_lshl_b32 s{sT0}, s{sN0}, 1")
    a(f"s_cmp_ge_u32 s{sWaveId}, 4")
    a(f"s_cbranch_scc1 L_{name}_loader")
    LWN = WN.bit_length() - 1
    a(f"v_and_b32 v{vWn}, {WN - 1}, v{vT0}")
    a(f"v_lshrrev_b32 v{vT0}, {LWN}, v{vT0}")
    a(f"v_lshrrev_b32 v{vT2}, 1, v{vI16}")
    a(f"v_mul_u32_u24 v{vT1}, {2048 * MBw}, v{vT0}")
    a(f"v_lshl_add_u32 v{vT1}, v{vI16}, 7, v{vT1}")
    for q in range(2):
        a(f"v_xor_b32 v{vT3}, {4 * q}, v{vG}")
        a(f"v_xor_b32 v{vT3}, v{vT3}, v{vT2}")
        a(f"v_lshl_add_u32 v{vVaX+q}, v{vT3}, 4, v{vT1}")
    a(f"v_bfe_u32 v{vT1}, v{vL}, 2, 2")
    a(f"v_and_b32 v{vT2}, 1, v{vG}")
    if RB == 256:
        a(f"v_lshl_add_u32 v{vT2}, v{vT2}, 2, v{vT1}")
    else:
        a(f"v_lshrrev_b32 v{vT3}, 1, v{vT1}")
        a(f"v_lshl_add_u32 v{vT2}, v{vT2}, 1, v{vT3}")
    a(f"v_lshl_add_u32 v{vT1}, v{vG}, 3, v{vT1}")
    a(f"v_lshlrev_b32 v{vT1}, {LRB}, v{vT1}")
    a(f"v_and_b32 v{vT3}, 3, v{vL}")
    a(f"v_lshl_add_u32 v{vT1}, v{vT3}, 3, v{vT1}")
    a(f"v_add_u32 v{vT1}, {XB}, v{vT1}")
    a(f"v_mul_u32_u24 v{vT3}, {NTw}, v{vWn}")
    for jj in range(NTw):
        a(f"v_add_u32 v{vVaW+jj}, {jj}, v{vT3}")
        a(f"v_xor_b32 v{vVaW+jj}, v{vVaW+jj}, v{vT2}")
        a(f"v_lshl_add_u32 v{vVaW+jj}, v{vVaW+jj}, 5, v{vT1}")
    a(f"v_lshlrev_b32 v{vBiasOff}, {5 + (NTw.bit_length() - 1)}, v{vWn}") if (NTw & (NTw - 1)) == 0 else a(f"v_mul_u32_u24 v{vBiasOff}, {32 * NTw}, v{vWn}")
    a(f"v_lshl_add_u32 v{vBiasOff}, v{vG}, 3, v{vBiasOff}")
    a(f"v_add_u32 v{vBiasOff}, s{sT0}, v{vBiasOff}")
    a("s_waitcnt lgkmcnt(0)")
    for sr, nb in ((sB, cfg["bytesB"]), (sO, cfg["bytesO"])):
        a(f"s_mov_b32 s{sr+2}, {nb}")
        a(f"s_mov_b32 s{sr+3}, 0x00020000")
    for j in range(NTw):
        a(f"buffer_load_dwordx2 v[{vBias+2*j}:{vBias+2*j+1}], v{vBiasOff}, s[{sB}:{sB+3}], 0 offen offset:{32*j}")
    a(f"v_mul_u32_u24 v{vEw}, {16 * MBw}, v{vT0}")
    a(f"v_add_u32 v{vEw}, v{vEw}, v{vI16}")
    a(f"v_mul_u32_u24 v{vEw}, {EP}, v{vEw}")
    a(f"v_mul_u32_u24 v{vT1}, {32 * NTw}, v{vWn}")
    a(f"v_lshl_add_u32 v{vT1}, v{vG}, 3, v{vT1}")
    a(f"v_add_u32 v{vEw}, v{vEw}, v{vT1}")
    a(f"v_lshrrev_b32 v{vT0}, 6, v{vTid}")
    a(f"v_mul_u32_u24 v{vT0}, {RXW}, v{vT0}")
    a(f"v_lshrrev_b32 v{vT1}, {LCR}, v{vL}")
    a(f"v_add_u32 v{vT1}, v{vT1}, v{vT0}")
    a(f"v_and_b32 v{vT2}, {CR - 1}, v{vL}")
    a(f"v_mul_u32_u24 v{vEr}, {EP}, v{vT1}")
    a(f"v_lshl_add_u32 v{vEr}, v{vT2}, 4, v{vEr}")
    a(f"v_add_u32 v{vT1}, s{sM0}, v{vT1}")
    a(f"v_mul_u32_u24 v{vOs}, {pO}, v{vT1}")
    a(f"v_lshl_add_u32 v{vT3}, v{vT2}, 4, s{sT0}")
    a(f"v_add_u32 v{vOs}, v{vOs}, v{vT3}")
    if cfg.get("ragged") is not None:
        nt_last, cvalid = cfg["ragged"]
        a(f"s_cmp_eq_u32 s{sNt}, {nt_last}")
        a(f"s_cselect_b32 s{sT1}, {cvalid}, {CR}")
        a(f"v_cmp_gt_u32 vcc, s{sT1}, v{vT2}")
        a(f"v_bfrev_b32 v{vT3}, 1")
        a(f"v_cndmask_b32 v{vOs}, v{vT3}, v{vOs}, vcc")
    a("s_waitcnt vmcnt(0)")
    for j in range(NTw):
        for mb in range(MBw):
            r = acc(mb, j)
            a(f"v_lshlrev_b32 v{r}, 16, v{vBias+2*j}")
            a(f"v_and_b32 v{r+1}, 0xffff0000, v{vBias+2*j}")
            a(f"v_lshlrev_b32 v{r+2}, 16, v{vBias+2*j+1}")
            a(f"v_and_b32 v{r+3}, 0xffff0000, v{vBias+2*j+1}")

    def rd_list(u):
        q = u % 2
        buf = u & 1
        out = []
        for mb in range(MBw):
            r = xf(buf, mb)
            out.append(f"ds_read_b128 v[{r}:{r+3}], v{vVaX+q} offset:{2048*mb}")
        for j in range(NTw):
            for h in range(2):
                r = wf(buf, j) + 2 * h
                out.append(f"ds_read_b64_tr_b16 v[{r}:{r+1}], v{vVaW+j} offset:{32*RB*q+4*RB*h}")
        return [] if 'notr' in DBG else out

    a("s_barrier")
    stamp()
    for ins in rd_list(0):
        a(ins)
    cur_slot = 0
    for u in range(2 * NS):
        s, q = u // 2, u % 2
        has_next = u + 1 < 2 * NS
        if has_next and q == 1:
            a("s_barrier")
            stamp()
            nslot = (s + 1) % Dslots
            delta = (nslot - cur_slot) * SLOT
            cur_slot = nslot
            for r in [vVaX, vVaX + 1] + [vVaW + j for j in range(NTw)]:
                a(f"v_add_u32 v{r}, {delta & 0xffffffff:#x}, v{r}")
        a("s_waitcnt lgkmcnt(0)")
        rds = rd_list(u + 1) if has_next else []
        nm = MBw * NTw
        for mb in range(MBw):
            for j in range(NTw):
                r = acc(mb, j)
                x = xf(u & 1, mb)
                b = wf(u & 1, j)
                if 'nomfma' not in DBG:
                    a(f"v_mfma_f32_16x16x32_bf16 v[{r}:{r+3}], v[{b}:{b+3}], v[{x}:{x+3}], v[{r}:{r+3}]")
                k = (len(rds) + nm - 1) // nm
                nm -= 1
                for ins in rds[:k]:
                    a(ins)
                rds = rds[k:]
    a("s_barrier")
    stamp()
    a("s_nop 7")
    for j in range(NTw):
        for mb in range(MBw):
            r = acc(mb, j)
            if cfg["epilogue"] == "relu2":
                for e in range(4):
                    a(f"v_max_f32 v{r+e}, 0, v{r+e}")
                a(f"v_pk_mul_f32 v[{r}:{r+1}], v[{r}:{r+1}], v[{r}:{r+1}]")
                a(f"v_pk_mul_f32 v[{r+2}:{r+3}], v[{r+2}:{r+3}], v[{r+2}:{r+3}]")
            a(f"v_cvt_pk_bf16_f32 v{r}, v{r}, v{r+1}")
            a(f"v_cvt_pk_bf16_f32 v{r+1}, v{r+2}, v{r+3}")
            a(f"ds_write_b64 v{vEw}, v[{r}:{r+1}] offset:{32*j+16*EP*mb}")
    a("s_waitcnt lgkmcnt(0)")
    a("s_barrier")
    RSI = 64 >> LCR
    for i in range(NST):
        r = vWf + 4 * i
        a(f"ds_read_b128 v[{r}:{r+3}], v{vEr} offset:{RSI*EP*i}")
    for i in range(NST):
        r = vWf + 4 * i
        a(f"s_mov_b32 s{sSoff}, {RSI * i * pO}")
        a(f"s_waitcnt lgkmcnt({NST - 1 - i})")
        if 'nostore' not in DBG:
            a(f"buffer_store_dwordx4 v[{r}:{r+3}], v{vOs}, s[{sO}:{sO+3}], s{sSoff} offen {os.environ.get('STFLAG', '') if name == 'ffn1_kernel' else ''}")
    if STAMP:
        stamp()
        a("s_mov_b64 exec, -1")
        a("s_waitcnt lgkmcnt(0) vmcnt(0)")
        a(f"s_load_dwordx2 s[{sB}:{sB+1}], s[0:1], 56")
        a("s_waitcnt lgkmcnt(0)")
        a(f"s_mov_b32 s{sB+2}, 0x7fffffff")
        a(f"s_lshl_b32 s{sT0}, s2, 9")
        a(f"s_add_u32 s{sT0}, s{sT0}, {8 << 20}")
        a(f"v_cmp_eq_u32 vcc, 0, v{vTid}")
        a(f"s_and_saveexec_b64 s[36:37], vcc")
        a(f"v_mov_b32 v{vT1}, s{sT0}")
        for i, r in enumerate(stamps):
            a(f"v_mov_b32 v{vT2}, s{r}")
            a(f"v_mov_b32 v{vT3}, s{r+1}")
            a(f"buffer_store_dwordx2 v[{vT2}:{vT3}], v{vT1}, s[{sB}:{sB+3}], 0 offen offset:{8*i}")
            a("s_nop 1")
    a("s_endpgm")
    a.label(f"L_{name}_loader")
    a(f"s_and_b32 s{sWaveX}, s{sWaveId}, 3")
    a(f"s_mov_b32 s{sT1}, {pA}")
    a(f"v_mul_u32_u24 v{vT1}, {RXW}, v{vT0}")
    a(f"v_lshrrev_b32 v{vT2}, 3, v{vL}")
    a(f"v_add_u32 v{vT1}, v{vT1}, v{vT2}")
    a(f"v_and_b32 v{vT2}, 7, v{vL}")
    for t in range(NDX):
        a(f"v_add_u32 v{vOffX+t}, {8 * t}, v{vT1}")
        a(f"v_bfe_u32 v{vT3}, v{vOffX+t}, 1, 3")
        a(f"v_xor_b32 v{vT3}, v{vT3}, v{vT2}")
        a(f"v_add_u32 v{vOffX+t}, s{sM0}, v{vOffX+t}")
        a(f"v_mul_lo_u32 v{vOffX+t}, v{vOffX+t}, s{sT1}")
        a(f"v_lshl_add_u32 v{vOffX+t}, v{vT3}, 4, v{vOffX+t}")
    a(f"s_mov_b32 s{sT1}, {pW}")
    a(f"v_lshrrev_b32 v{vT1}, {LCR}, v{vL}")
    a(f"v_and_b32 v{vT2}, {CR - 1}, v{vL}")
    for t in range(NDW):
        if RB == 256:
            a(f"v_lshlrev_b32 v{vT3}, 1, v{vT1}")
            a(f"v_xor_b32 v{vT3}, v{vT3}, v{vT2}")
            if (t >> 1) & 1:
                a(f"v_xor_b32 v{vT3}, 8, v{vT3}")
        else:
            a(f"v_and_b32 v{vT3}, 2, v{vT1}")
            a(f"v_xor_b32 v{vT3}, v{vT3}, v{vT2}")
            if t & 1:
                a(f"v_xor_b32 v{vT3}, 4, v{vT3}")
        a(f"v_lshl_add_u32 v{vOffW+t}, v{vT0}, 4, v{vT1}")
        a(f"v_add_u32 v{vOffW+t}, {RPI * t}, v{vOffW+t}")
        a(f"v_mul_lo_u32 v{vOffW+t}, v{vOffW+t}, s{sT1}")
        a(f"v_lshl_add_u32 v{vT3}, v{vT3}, 4, s{sT0}")
        a(f"v_add_u32 v{vOffW+t}, v{vOffW+t}, v{vT3}")
    a(f"s_lshl_b32 s{sWaveW}, s{sWaveX}, {4 + LRB}")
    a(f"s_add_u32 s{sWaveW}, s{sWaveW}, {XB}")
    a(f"s_mul_i32 s{sWaveX}, s{sWaveX}, {RXW * 128}")
    a("s_waitcnt lgkmcnt(0)")
    for sr, nb in ((sA, cfg["bytesA"]), (sW, cfg["bytesW"])):
        a(f"s_mov_b32 s{sr+2}, {nb}")
        a(f"s_mov_b32 s{sr+3}, 0x00020000")
    vm = VmSim()

    def issue_stage(s):
        slot = s % Dslots
        for t in range(NDW):
            a(f"s_add_u32 m0, s{sWaveW}, {slot * SLOT + t * 1024}")
            a("s_nop 0")
            if 'nodma' not in DBG:
                a(f"buffer_load_dwordx4 v{vOffW+t}, s[{sW}:{sW+3}], s{sKW} offen lds")
            vm.issue(("dma", s))
        for t in range(NDX):
            a(f"s_add_u32 m0, s{sWaveX}, {slot * SLOT + t * 1024}")
            a("s_nop 0")
            if 'nox' not in DBG:
                a(f"buffer_load_dwordx4 v{vOffX+t}, s[{sA}:{sA+3}], s{sKX} offen lds")
            vm.issue(("dma", s))
        if s + 1 < NS:
            a(f"s_add_u32 s{sKW}, s{sKW}, {64 * pW}")
            a(f"s_add_u32 s{sKX}, s{sKX}, 128")
            a(f"s_cmp_ge_u32 s{sKX}, {128 * NS}")
            a(f"s_cselect_b32 s{sT0}, {64 * pW * NS}, 0")
            a(f"s_cselect_b32 s{sT1}, {128 * NS}, 0")
            a(f"s_sub_u32 s{sKW}, s{sKW}, s{sT0}")
            a(f"s_sub_u32 s{sKX}, s{sKX}, s{sT1}")

    for s in range(min(P0, NS)):
        issue_stage(s)
    nxt = min(P0, NS)
    for s in range(NS):
        a(f"s_waitcnt vmcnt({vm.count_after(('dma', s))})")
        a("s_barrier")
        burst = 0
        while nxt < NS and nxt <= s + P and burst < cfg.get('RAMP', 2):
            issue_stage(nxt)
            nxt += 1
            burst += 1
    if cfg.get("TAILPF"):
        arg, nbytes, ninst = cfg["TAILPF"]
        a(f"s_load_dwordx2 s[{sA}:{sA+1}], s[0:1], {arg}")
        a(f"s_lshr_b32 s{sT0}, s2, 3")
        a(f"s_mul_i32 s{sT0}, s{sT0}, {4096 * ninst}")
        a(f"v_and_b32 v{vT0}, 255, v{vTid}")
        a(f"v_lshlrev_b32 v{vT0}, 4, v{vT0}")
        a(f"v_add_u32 v{vT0}, s{sT0}, v{vT0}")
        a("s_waitcnt lgkmcnt(0)")
        a(f"s_mov_b32 s{sA+2}, {nbytes}")
        for i in range(ninst):
            a(f"s_mov_b32 s{sSoff}, {4096 * i}")
            r = 8 + 4 * (i % 32)
            a(f"buffer_load_dwordx4 v[{r}:{r+3}], v{vT0}, s[{sA}:{sA+3}], s{sSoff} offen")
    if cfg.get("PREFETCH"):
        arg, nbytes, nparts = cfg["PREFETCH"]
        part_bytes = nbytes // nparts
        ninst = (part_bytes + 8191) // 8192
        a("s_endpgm")
        a.label(f"L_{name}_pf")
        a(f"s_cmp_ge_u32 s2, {cfg['NWG'] + 8 * nparts}")
        a(f"s_cbranch_scc1 L_{name}_end")
        a(f"s_load_dwordx2 s[{sW}:{sW+1}], s[0:1], {arg}")
        a(f"s_sub_u32 s{sT0}, s2, {cfg['NWG']}")
        a(f"s_lshr_b32 s{sT0}, s{sT0}, 3")
        a(f"s_mul_i32 s{sT0}, s{sT0}, {part_bytes}")
        a(f"v_lshlrev_b32 v{vT0}, 4, v{vTid}")
        a(f"v_add_u32 v{vT0}, s{sT0}, v{vT0}")
        a("s_waitcnt lgkmcnt(0)")
        a(f"s_mov_b32 s{sW+2}, {nbytes}")
        a(f"s_mov_b32 s{sW+3}, 0x00020000")
        for i in range(ninst):
            a(f"s_mov_b32 s{sSoff}, {8192 * i}")
            r = 8 + 4 * (i % 32)
            a(f"buffer_load_dwordx4 v[{r}:{r+3}], v{vT0}, s[{sW}:{sW+3}], s{sSoff} offen")
            if i % 16 == 15:
                a("s_waitcnt vmcnt(32)")
    a.label(f"L_{name}_end")
    a("s_endpgm")
    accum = (nV + 3) // 4 * 4
    kd = f""".section .rodata,"a"
.p2align 6
.amdhsa_kernel {name}
  .amdhsa_next_free_vgpr {accum}
  .amdhsa_next_free_sgpr 102
  .amdhsa_accum_offset {accum}
  .amdhsa_group_segment_fixed_size 0
  .amdhsa_kernarg_size 64
  .amdhsa_user_sgpr_count 2
  .amdhsa_user_sgpr_kernarg_segment_ptr 1
  .amdhsa_system_sgpr_workgroup_id_x 1
.end_amdhsa_kernel
.text
"""
    a.lines.append(kd)
    return Dslots * SLOT


def tilemap_k1(a, sMt, sNt, sT0, sT1):
    a(f"s_and_b32 s{sT0}, s2, 7")
    a(f"s_lshr_b32 s{sT1}, s2, 3")
    a(f"s_mul_i32 s{sMt}, s{sT1}, 37")
    a(f"s_lshr_b32 s{sMt}, s{sMt}, 8")
    a(f"s_mul_i32 s{sNt}, s{sMt}, 7")
    a(f"s_sub_u32 s{sNt}, s{sT1}, s{sNt}")
    a(f"s_lshr_b32 s{sT1}, s{sT0}, 1")
    a(f"s_lshl_b32 s{sT1}, s{sT1}, 2")
    a(f"s_add_u32 s{sMt}, s{sMt}, s{sT1}")
    a(f"s_and_b32 s{sT0}, s{sT0}, 1")
    a(f"s_mul_i32 s{sT0}, s{sT0}, 7")
    a(f"s_add_u32 s{sNt}, s{sNt}, s{sT0}")


def tilemap_k1b(a, sMt, sNt, sT0, sT1):
    a(f"s_and_b32 s{sT0}, s2, 7")
    a(f"s_lshr_b32 s{sT1}, s2, 3")
    a(f"s_cmp_ge_u32 s{sT1}, 14")
    a(f"s_cselect_b32 s{sMt}, 1, 0")
    a(f"s_cselect_b32 s{sNt}, 14, 0")
    a(f"s_sub_u32 s{sNt}, s{sT1}, s{sNt}")
    a(f"s_lshl_b32 s{sT0}, s{sT0}, 1")
    a(f"s_add_u32 s{sMt}, s{sMt}, s{sT0}")


def tilemap_k2(a, sMt, sNt, sT0, sT1):
    a(f"s_and_b32 s{sT0}, s2, 7")
    a(f"s_lshr_b32 s{sT1}, s2, 3")
    a(f"s_mul_i32 s{sT0}, s{sT0}, 28")
    a(f"s_add_u32 s{sT0}, s{sT0}, s{sT1}")
    a(f"s_mul_i32 s{sMt}, s{sT0}, 205")
    a(f"s_lshr_b32 s{sMt}, s{sMt}, 11")
    a(f"s_mul_i32 s{sNt}, s{sMt}, 10")
    a(f"s_sub_u32 s{sNt}, s{sT0}, s{sNt}")


HEADER = """; Kernarg layout for this problem (64 bytes, ptrs only, base s[0:1]):
"""


def main():
    out = sys.argv[1] if len(sys.argv) > 1 else "standalone__dense_activation_squared_relu__prompt.s"
    a = Asm()
    E = lambda k, d: int(os.environ.get(k, d))
    k1 = dict(name="ffn1_kernel", NWG=224, WM=4, WN=1, MBw=2, NTw=8, K=640, pitchA=1280, pitchW=3456, pitchO=3456,
              argA=0, argW=8, argB=16, argO=56,
              bytesA=S_ * D_ * 2, bytesW=D_ * F_ * 2, bytesB=F_ * 2, bytesO=S_ * F_ * 2,
              tilemap=(tilemap_k1b if E('K1MAP', 0) else tilemap_k1), epilogue="relu2", P=E("P1", 3), D=E("D1", 5), P0=E("P01", 2), ragged=(13, 8), ROTRED=3)
    k2 = dict(name="ffn2_kernel", NWG=224, WM=2, WN=2, MBw=3, NTw=2, K=1728, pitchA=3456, pitchW=1280, pitchO=1280,
              argA=56, argW=24, argB=32, argO=40,
              bytesA=S_ * F_ * 2, bytesW=F_ * D_ * 2, bytesB=D_ * 2, bytesO=S_ * D_ * 2,
              tilemap=tilemap_k2, epilogue="bias", P=E("P2", 6), D=E("D2", 8), P0=E("P02", 2), ragged=None, ROTRED=1)
    if E("PF", 0):
        k1["PREFETCH"] = (24, F_ * D_ * 2, 4)
    if E("TPF", 10):
        k1["TAILPF"] = (24, F_ * D_ * 2, E("TPF", 10))
    lds1 = gen_gemm(a, k1)
    lds2 = gen_gemm(a, k2)
    hdr = HEADER
    hdr += f"; @launch kernel=ffn1_kernel grid=({k1['NWG'] + (32 if k1.get('PREFETCH') else 0)},1,1) block=(512,1,1) lds={lds1}\n"
    hdr += f"; @launch kernel=ffn2_kernel grid=({k2['NWG']},1,1) block=(512,1,1) lds={lds2}\n"
    hdr += '.amdgcn_target "amdgcn-amd-amdhsa--gfx950"\n.text\n'
    open(out, "w").write(hdr + a.text())
    print("wrote", out, "lds", lds1, lds2)


if __name__ == "__main__":
    main()
```

```python
import sys, os
DBG = set(os.environ.get('GEN_DBG', '').split(','))

S_, D_, F_ = 2048, 640, 1728


class Asm:
    def __init__(self):
        self.lines = []

    def __call__(self, s):
        self.lines.append("    " + s)

    def label(self, s):
        self.lines.append(s + ":")

    def comment(self, s):
        self.lines.append("    ; " + s)

    def text(self):
        return "\n".join(self.lines) + "\n"


class VmSim:
    def __init__(self):
        self.ops = []

    def issue(self, tag, n=1):
        self.ops += [tag] * n

    def count_after(self, tag):
        last = max(i for i, t in enumerate(self.ops) if t == tag)
        return len(self.ops) - 1 - last


E = lambda k, d: int(os.environ.get(k, d))


def gen_gemm(a, cfg):
    name = cfg["name"]
    WM, WN, MBw, NTw, K = cfg["WM"], cfg["WN"], cfg["MBw"], cfg["NTw"], cfg["K"]
    pA, pW, pO = cfg["pitchA"], cfg["pitchW"], cfg["pitchO"]
    P, Dslots = cfg["P"], cfg["D"]
    P0 = cfg.get('P0', 2)
    assert WM * WN == 4
    tM = 16 * WM * MBw
    tN = 16 * WN * NTw
    RB = 2 * tN
    assert RB in (128, 256)
    LRB = RB.bit_length() - 1
    CR = RB // 16
    LCR = CR.bit_length() - 1
    XB = tM * 128
    WB = 64 * RB
    SLOT = XB + WB
    NS = K // 64
    assert K % 64 == 0 and Dslots >= min(NS, P + 2)
    RXW = tM // 4
    assert RXW % 8 == 0
    NDX = RXW // 8
    NDW = RB // 64
    RPI = 1024 // RB
    EP = RB + 16
    NST = (RXW * CR) // 64
    assert (RXW * CR) % 64 == 0
    vTid = 0
    vL, vG, vI16, vT0, vT1, vT2, vT3 = 1, 2, 3, 4, 5, 6, 7
    vOffX = 8
    vOffW = 12
    vVaX = 16
    vVaW = 18
    vEw = 26
    vBiasOff = 27
    vEr = 28
    vOs = 29
    vWn = 30
    vBias = 32
    vAcc = 48
    vWf = vAcc + MBw * NTw * 4
    vXf = vWf + 2 * NTw * 4
    nV = max(vXf + 2 * MBw * 4, vWf + 4 * NST)

    def acc(mb, j):
        return vAcc + (mb * NTw + j) * 4

    def wf(buf, j):
        return vWf + (buf * NTw + j) * 4

    def xf(buf, mb):
        return vXf + (buf * MBw + mb) * 4

    sA, sW, sB, sO = 4, 8, 12, 16
    sWaveX, sWaveW, sM0, sN0, sT0, sT1, sMt, sNt, sSoff = 20, 21, 22, 23, 24, 25, 26, 27, 28
    sKW, sKX, sRot, sWaveId = 29, 30, 31, 32
    STAMP = 'stamp' in DBG
    stamps = []

    def stamp():
        if STAMP:
            r = 40 + 2 * len(stamps)
            stamps.append(r)
            a(f"s_memtime s[{r}:{r+1}]")

    a.lines.append(f".globl {name}")
    a.lines.append(".p2align 8")
    a.lines.append(f".type {name},@function")
    a.label(name)
    if cfg.get("PREFETCH"):
        a(f"s_cmp_ge_u32 s2, {cfg['NWG']}")
        a(f"s_cbranch_scc1 L_{name}_pf")
    else:
        a(f"s_cmp_ge_u32 s2, {cfg['NWG']}")
        a(f"s_cbranch_scc1 L_{name}_end")
    stamp()
    a(f"s_load_dwordx2 s[{sA}:{sA+1}], s[0:1], {cfg['argA']}")
    a(f"s_load_dwordx2 s[{sW}:{sW+1}], s[0:1], {cfg['argW']}")
    a(f"s_load_dwordx2 s[{sB}:{sB+1}], s[0:1], {cfg['argB']}")
    a(f"s_load_dwordx2 s[{sO}:{sO+1}], s[0:1], {cfg['argO']}")
    cfg["tilemap"](a, sMt, sNt, sT0, sT1)
    G = cfg.get('ROTG', 0)
    a(f"s_lshr_b32 s{sRot}, s2, 3")
    if G:
        for _ in range(32 // G + 1):
            a(f"s_cmp_ge_u32 s{sRot}, {G}")
            a(f"s_cselect_b32 s{sT0}, {G}, 0")
            a(f"s_sub_u32 s{sRot}, s{sRot}, s{sT0}")
        a(f"s_mul_i32 s{sRot}, s{sRot}, {NS // G}")
    else:
        for _ in range(cfg.get('ROTRED', 3)):
            a(f"s_cmp_ge_u32 s{sRot}, {NS}")
            a(f"s_cselect_b32 s{sT0}, {NS}, 0")
            a(f"s_sub_u32 s{sRot}, s{sRot}, s{sT0}")
    a(f"s_mul_i32 s{sKW}, s{sRot}, {64 * pW}")
    a(f"s_lshl_b32 s{sKX}, s{sRot}, 7")
    a(f"s_mul_i32 s{sM0}, s{sMt}, {tM}")
    a(f"s_mul_i32 s{sN0}, s{sNt}, {tN}")
    a(f"v_and_b32 v{vL}, 63, v{vTid}")
    a(f"v_lshrrev_b32 v{vG}, 4, v{vL}")
    a(f"v_and_b32 v{vI16}, 15, v{vL}")
    a(f"v_lshrrev_b32 v{vT0}, 6, v{vTid}")
    a("s_nop 1")
    a(f"v_readfirstlane_b32 s{sWaveId}, v{vT0}")
    a(f"v_and_b32 v{vT0}, 3, v{vT0}")
    a(f"s_lshl_b32 s{sT0}, s{sN0}, 1")
    a(f"s_cmp_ge_u32 s{sWaveId}, 4")
    a(f"s_cbranch_scc1 L_{name}_loader")
    LWN = WN.bit_length() - 1
    a(f"v_and_b32 v{vWn}, {WN - 1}, v{vT0}")
    a(f"v_lshrrev_b32 v{vT0}, {LWN}, v{vT0}")
    a(f"v_lshrrev_b32 v{vT2}, 1, v{vI16}")
    a(f"v_mul_u32_u24 v{vT1}, {2048 * MBw}, v{vT0}")
    a(f"v_lshl_add_u32 v{vT1}, v{vI16}, 7, v{vT1}")
    for q in range(2):
        a(f"v_xor_b32 v{vT3}, {4 * q}, v{vG}")
        a(f"v_xor_b32 v{vT3}, v{vT3}, v{vT2}")
        a(f"v_lshl_add_u32 v{vVaX+q}, v{vT3}, 4, v{vT1}")
    a(f"v_bfe_u32 v{vT1}, v{vL}, 2, 2")
    a(f"v_and_b32 v{vT2}, 1, v{vG}")
    if RB == 256:
        a(f"v_lshl_add_u32 v{vT2}, v{vT2}, 2, v{vT1}")
    else:
        a(f"v_lshrrev_b32 v{vT3}, 1, v{vT1}")
        a(f"v_lshl_add_u32 v{vT2}, v{vT2}, 1, v{vT3}")
    a(f"v_lshl_add_u32 v{vT1}, v{vG}, 3, v{vT1}")
    a(f"v_lshlrev_b32 v{vT1}, {LRB}, v{vT1}")
    a(f"v_and_b32 v{vT3}, 3, v{vL}")
    a(f"v_lshl_add_u32 v{vT1}, v{vT3}, 3, v{vT1}")
    a(f"v_add_u32 v{vT1}, {XB}, v{vT1}")
    a(f"v_mul_u32_u24 v{vT3}, {NTw}, v{vWn}")
    for jj in range(NTw):
        a(f"v_add_u32 v{vVaW+jj}, {jj}, v{vT3}")
        a(f"v_xor_b32 v{vVaW+jj}, v{vVaW+jj}, v{vT2}")
        a(f"v_lshl_add_u32 v{vVaW+jj}, v{vVaW+jj}, 5, v{vT1}")
    a(f"v_lshlrev_b32 v{vBiasOff}, {5 + (NTw.bit_length() - 1)}, v{vWn}") if (NTw & (NTw - 1)) == 0 else a(f"v_mul_u32_u24 v{vBiasOff}, {32 * NTw}, v{vWn}")
    a(f"v_lshl_add_u32 v{vBiasOff}, v{vG}, 3, v{vBiasOff}")
    a(f"v_add_u32 v{vBiasOff}, s{sT0}, v{vBiasOff}")
    a("s_waitcnt lgkmcnt(0)")
    for sr, nb in ((sB, cfg["bytesB"]), (sO, cfg["bytesO"])):
        a(f"s_mov_b32 s{sr+2}, {nb}")
        a(f"s_mov_b32 s{sr+3}, 0x00020000")
    for j in range(NTw):
        a(f"buffer_load_dwordx2 v[{vBias+2*j}:{vBias+2*j+1}], v{vBiasOff}, s[{sB}:{sB+3}], 0 offen offset:{32*j}")
    a(f"v_mul_u32_u24 v{vEw}, {16 * MBw}, v{vT0}")
    a(f"v_add_u32 v{vEw}, v{vEw}, v{vI16}")
    a(f"v_mul_u32_u24 v{vEw}, {EP}, v{vEw}")
    a(f"v_mul_u32_u24 v{vT1}, {32 * NTw}, v{vWn}")
    a(f"v_lshl_add_u32 v{vT1}, v{vG}, 3, v{vT1}")
    a(f"v_add_u32 v{vEw}, v{vEw}, v{vT1}")
    a(f"v_lshrrev_b32 v{vT0}, 6, v{vTid}")
    a(f"v_mul_u32_u24 v{vT0}, {RXW}, v{vT0}")
    a(f"v_lshrrev_b32 v{vT1}, {LCR}, v{vL}")
    a(f"v_add_u32 v{vT1}, v{vT1}, v{vT0}")
    a(f"v_and_b32 v{vT2}, {CR - 1}, v{vL}")
    a(f"v_mul_u32_u24 v{vEr}, {EP}, v{vT1}")
    a(f"v_lshl_add_u32 v{vEr}, v{vT2}, 4, v{vEr}")
    a(f"v_add_u32 v{vT1}, s{sM0}, v{vT1}")
    a(f"v_mul_u32_u24 v{vOs}, {pO}, v{vT1}")
    a(f"v_lshl_add_u32 v{vT3}, v{vT2}, 4, s{sT0}")
    a(f"v_add_u32 v{vOs}, v{vOs}, v{vT3}")
    if cfg.get("ragged") is not None:
        nt_last, cvalid = cfg["ragged"]
        a(f"s_cmp_eq_u32 s{sNt}, {nt_last}")
        a(f"s_cselect_b32 s{sT1}, {cvalid}, {CR}")
        a(f"v_cmp_gt_u32 vcc, s{sT1}, v{vT2}")
        a(f"v_bfrev_b32 v{vT3}, 1")
        a("s_nop 0")
        a(f"v_cndmask_b32 v{vOs}, v{vT3}, v{vOs}, vcc")
    a("s_waitcnt vmcnt(0)")
    for j in range(NTw):
        for mb in range(MBw):
            r = acc(mb, j)
            a(f"v_lshlrev_b32 v{r}, 16, v{vBias+2*j}")
            a(f"v_and_b32 v{r+1}, 0xffff0000, v{vBias+2*j}")
            a(f"v_lshlrev_b32 v{r+2}, 16, v{vBias+2*j+1}")
            a(f"v_and_b32 v{r+3}, 0xffff0000, v{vBias+2*j+1}")

    def rd_list(u):
        q = u % 2
        buf = u & 1
        out = []
        for mb in range(MBw):
            r = xf(buf, mb)
            out.append(f"ds_read_b128 v[{r}:{r+3}], v{vVaX+q} offset:{2048*mb}")
        for j in range(NTw):
            for h in range(2):
                r = wf(buf, j) + 2 * h
                out.append(f"ds_read_b64_tr_b16 v[{r}:{r+1}], v{vVaW+j} offset:{32*RB*q+4*RB*h}")
        return [] if 'notr' in DBG else out

    a("s_barrier")
    stamp()
    for ins in rd_list(0):
        a(ins)
    cur_slot = 0
    for u in range(2 * NS):
        s, q = u // 2, u % 2
        has_next = u + 1 < 2 * NS
        if has_next and q == 1:
            a("s_barrier")
            stamp()
            nslot = (s + 1) % Dslots
            delta = (nslot - cur_slot) * SLOT
            cur_slot = nslot
            for r in [vVaX, vVaX + 1] + [vVaW + j for j in range(NTw)]:
                a(f"v_add_u32 v{r}, {delta & 0xffffffff:#x}, v{r}")
        a("s_waitcnt lgkmcnt(0)")
        rds = rd_list(u + 1) if has_next else []
        nm = MBw * NTw
        for mb in range(MBw):
            for j in range(NTw):
                r = acc(mb, j)
                x = xf(u & 1, mb)
                b = wf(u & 1, j)
                if 'nomfma' not in DBG:
                    a(f"v_mfma_f32_16x16x32_bf16 v[{r}:{r+3}], v[{b}:{b+3}], v[{x}:{x+3}], v[{r}:{r+3}]")
                k = (len(rds) + nm - 1) // nm
                nm -= 1
                for ins in rds[:k]:
                    a(ins)
                rds = rds[k:]
    a("s_barrier")
    stamp()
    a("s_nop 7")
    for j in range(NTw):
        for mb in range(MBw):
            r = acc(mb, j)
            if cfg["epilogue"] == "relu2":
                for e in range(4):
                    a(f"v_max_f32 v{r+e}, 0, v{r+e}")
                a(f"v_pk_mul_f32 v[{r}:{r+1}], v[{r}:{r+1}], v[{r}:{r+1}]")
                a(f"v_pk_mul_f32 v[{r+2}:{r+3}], v[{r+2}:{r+3}], v[{r+2}:{r+3}]")
            a(f"v_cvt_pk_bf16_f32 v{r}, v{r}, v{r+1}")
            a(f"v_cvt_pk_bf16_f32 v{r+1}, v{r+2}, v{r+3}")
            a(f"ds_write_b64 v{vEw}, v[{r}:{r+1}] offset:{32*j+16*EP*mb}")
    a("s_waitcnt lgkmcnt(0)")
    a("s_barrier")
    RSI = 64 >> LCR
    for i in range(NST):
        r = vWf + 4 * i
        a(f"ds_read_b128 v[{r}:{r+3}], v{vEr} offset:{RSI*EP*i}")
    for i in range(NST):
        r = vWf + 4 * i
        a(f"s_mov_b32 s{sSoff}, {RSI * i * pO}")
        a(f"s_waitcnt lgkmcnt({NST - 1 - i})")
        if 'nostore' not in DBG:
            a(f"buffer_store_dwordx4 v[{r}:{r+3}], v{vOs}, s[{sO}:{sO+3}], s{sSoff} offen {os.environ.get('STFLAG', 'sc0 sc1') if name == 'ffn1_kernel' else ''}")
    if STAMP:
        stamp()
        a("s_mov_b64 exec, -1")
        a("s_waitcnt lgkmcnt(0) vmcnt(0)")
        a(f"s_load_dwordx2 s[{sB}:{sB+1}], s[0:1], 56")
        a("s_waitcnt lgkmcnt(0)")
        a(f"s_mov_b32 s{sB+2}, 0x7fffffff")
        a(f"s_lshl_b32 s{sT0}, s2, 9")
        a(f"s_add_u32 s{sT0}, s{sT0}, {8 << 20}")
        a(f"v_cmp_eq_u32 vcc, 0, v{vTid}")
        a(f"s_and_saveexec_b64 s[36:37], vcc")
        a(f"v_mov_b32 v{vT1}, s{sT0}")
        for i, r in enumerate(stamps):
            a(f"v_mov_b32 v{vT2}, s{r}")
            a(f"v_mov_b32 v{vT3}, s{r+1}")
            a(f"buffer_store_dwordx2 v[{vT2}:{vT3}], v{vT1}, s[{sB}:{sB+3}], 0 offen offset:{8*i}")
            a("s_nop 1")
    a("s_endpgm")
    a.label(f"L_{name}_loader")
    if E("LPRIO", 0):
        a(f"s_setprio {E('LPRIO', 0)}")
    a(f"s_and_b32 s{sWaveX}, s{sWaveId}, 3")
    a(f"s_mov_b32 s{sT1}, {pA}")
    a(f"v_mul_u32_u24 v{vT1}, {RXW}, v{vT0}")
    a(f"v_lshrrev_b32 v{vT2}, 3, v{vL}")
    a(f"v_add_u32 v{vT1}, v{vT1}, v{vT2}")
    a(f"v_and_b32 v{vT2}, 7, v{vL}")
    for t in range(NDX):
        a(f"v_add_u32 v{vOffX+t}, {8 * t}, v{vT1}")
        a(f"v_bfe_u32 v{vT3}, v{vOffX+t}, 1, 3")
        a(f"v_xor_b32 v{vT3}, v{vT3}, v{vT2}")
        a(f"v_add_u32 v{vOffX+t}, s{sM0}, v{vOffX+t}")
        a(f"v_mul_lo_u32 v{vOffX+t}, v{vOffX+t}, s{sT1}")
        a(f"v_lshl_add_u32 v{vOffX+t}, v{vT3}, 4, v{vOffX+t}")
    a(f"s_mov_b32 s{sT1}, {pW}")
    a(f"v_lshrrev_b32 v{vT1}, {LCR}, v{vL}")
    a(f"v_and_b32 v{vT2}, {CR - 1}, v{vL}")
    for t in range(NDW):
        if RB == 256:
            a(f"v_lshlrev_b32 v{vT3}, 1, v{vT1}")
            a(f"v_xor_b32 v{vT3}, v{vT3}, v{vT2}")
            if (t >> 1) & 1:
                a(f"v_xor_b32 v{vT3}, 8, v{vT3}")
        else:
            a(f"v_and_b32 v{vT3}, 2, v{vT1}")
            a(f"v_xor_b32 v{vT3}, v{vT3}, v{vT2}")
            if t & 1:
                a(f"v_xor_b32 v{vT3}, 4, v{vT3}")
        a(f"v_lshl_add_u32 v{vOffW+t}, v{vT0}, 4, v{vT1}")
        a(f"v_add_u32 v{vOffW+t}, {RPI * t}, v{vOffW+t}")
        a(f"v_mul_lo_u32 v{vOffW+t}, v{vOffW+t}, s{sT1}")
        a(f"v_lshl_add_u32 v{vT3}, v{vT3}, 4, s{sT0}")
        a(f"v_add_u32 v{vOffW+t}, v{vOffW+t}, v{vT3}")
    a(f"s_lshl_b32 s{sWaveW}, s{sWaveX}, {4 + LRB}")
    a(f"s_add_u32 s{sWaveW}, s{sWaveW}, {XB}")
    a(f"s_mul_i32 s{sWaveX}, s{sWaveX}, {RXW * 128}")
    a("s_waitcnt lgkmcnt(0)")
    for sr, nb in ((sA, cfg["bytesA"]), (sW, cfg["bytesW"])):
        a(f"s_mov_b32 s{sr+2}, {nb}")
        a(f"s_mov_b32 s{sr+3}, 0x00020000")
    vm = VmSim()

    def issue_stage(s):
        slot = s % Dslots
        for t in range(NDW):
            a(f"s_add_u32 m0, s{sWaveW}, {slot * SLOT + t * 1024}")
            a("s_nop 0")
            if 'nodma' not in DBG:
                a(f"buffer_load_dwordx4 v{vOffW+t}, s[{sW}:{sW+3}], s{sKW} offen lds")
            vm.issue(("dma", s))
        for t in range(NDX):
            a(f"s_add_u32 m0, s{sWaveX}, {slot * SLOT + t * 1024}")
            a("s_nop 0")
            if 'nox' not in DBG:
                a(f"buffer_load_dwordx4 v{vOffX+t}, s[{sA}:{sA+3}], s{sKX} offen lds")
            vm.issue(("dma", s))
        if s + 1 < NS:
            a(f"s_add_u32 s{sKW}, s{sKW}, {64 * pW}")
            a(f"s_add_u32 s{sKX}, s{sKX}, 128")
            a(f"s_cmp_ge_u32 s{sKX}, {128 * NS}")
            a(f"s_cselect_b32 s{sT0}, {64 * pW * NS}, 0")
            a(f"s_cselect_b32 s{sT1}, {128 * NS}, 0")
            a(f"s_sub_u32 s{sKW}, s{sKW}, s{sT0}")
            a(f"s_sub_u32 s{sKX}, s{sKX}, s{sT1}")

    for s in range(min(P0, NS)):
        issue_stage(s)
    nxt = min(P0, NS)
    for s in range(NS):
        a(f"s_waitcnt vmcnt({vm.count_after(('dma', s))})")
        a("s_barrier")
        burst = 0
        while nxt < NS and nxt <= s + P and burst < cfg.get('RAMP', 2):
            issue_stage(nxt)
            nxt += 1
            burst += 1
    if cfg.get("TAILPF"):
        arg, nbytes, ninst = cfg["TAILPF"]
        a(f"s_load_dwordx2 s[{sA}:{sA+1}], s[0:1], {arg}")
        a(f"s_lshr_b32 s{sT0}, s2, 3")
        a(f"s_mul_i32 s{sT0}, s{sT0}, {4096 * ninst}")
        a(f"v_and_b32 v{vT0}, 255, v{vTid}")
        a(f"v_lshlrev_b32 v{vT0}, 4, v{vT0}")
        a(f"v_add_u32 v{vT0}, s{sT0}, v{vT0}")
        a("s_waitcnt lgkmcnt(0)")
        a(f"s_mov_b32 s{sA+2}, {nbytes}")
        for i in range(ninst):
            a(f"s_mov_b32 s{sSoff}, {4096 * i}")
            r = 8 + 4 * (i % 32)
            a(f"buffer_load_dwordx4 v[{r}:{r+3}], v{vT0}, s[{sA}:{sA+3}], s{sSoff} offen")
    if cfg.get("PREFETCH"):
        arg, nbytes, nparts = cfg["PREFETCH"]
        part_bytes = nbytes // nparts
        ninst = (part_bytes + 8191) // 8192
        a("s_endpgm")
        a.label(f"L_{name}_pf")
        a(f"s_cmp_ge_u32 s2, {cfg['NWG'] + 8 * nparts}")
        a(f"s_cbranch_scc1 L_{name}_end")
        a(f"s_load_dwordx2 s[{sW}:{sW+1}], s[0:1], {arg}")
        a(f"s_sub_u32 s{sT0}, s2, {cfg['NWG']}")
        a(f"s_lshr_b32 s{sT0}, s{sT0}, 3")
        a(f"s_mul_i32 s{sT0}, s{sT0}, {part_bytes}")
        a(f"v_lshlrev_b32 v{vT0}, 4, v{vTid}")
        a(f"v_add_u32 v{vT0}, s{sT0}, v{vT0}")
        a("s_waitcnt lgkmcnt(0)")
        a(f"s_mov_b32 s{sW+2}, {nbytes}")
        a(f"s_mov_b32 s{sW+3}, 0x00020000")
        for i in range(ninst):
            a(f"s_mov_b32 s{sSoff}, {8192 * i}")
            r = 8 + 4 * (i % 32)
            a(f"buffer_load_dwordx4 v[{r}:{r+3}], v{vT0}, s[{sW}:{sW+3}], s{sSoff} offen")
            if i % 16 == 15:
                a("s_waitcnt vmcnt(32)")
    a.label(f"L_{name}_end")
    a("s_endpgm")
    accum = (nV + 3) // 4 * 4
    kd = f""".section .rodata,"a"
.p2align 6
.amdhsa_kernel {name}
  .amdhsa_next_free_vgpr {accum}
  .amdhsa_next_free_sgpr 102
  .amdhsa_accum_offset {accum}
  .amdhsa_group_segment_fixed_size 0
  .amdhsa_kernarg_size 64
  .amdhsa_user_sgpr_count 2
  .amdhsa_user_sgpr_kernarg_segment_ptr 1
  .amdhsa_system_sgpr_workgroup_id_x 1
.end_amdhsa_kernel
.text
"""
    a.lines.append(kd)
    return Dslots * SLOT


def tilemap_k1(a, sMt, sNt, sT0, sT1):
    a(f"s_and_b32 s{sT0}, s2, 7")
    a(f"s_lshr_b32 s{sT1}, s2, 3")
    a(f"s_mul_i32 s{sMt}, s{sT1}, 37")
    a(f"s_lshr_b32 s{sMt}, s{sMt}, 8")
    a(f"s_mul_i32 s{sNt}, s{sMt}, 7")
    a(f"s_sub_u32 s{sNt}, s{sT1}, s{sNt}")
    a(f"s_lshr_b32 s{sT1}, s{sT0}, 1")
    a(f"s_lshl_b32 s{sT1}, s{sT1}, 2")
    a(f"s_add_u32 s{sMt}, s{sMt}, s{sT1}")
    a(f"s_and_b32 s{sT0}, s{sT0}, 1")
    a(f"s_mul_i32 s{sT0}, s{sT0}, 7")
    a(f"s_add_u32 s{sNt}, s{sNt}, s{sT0}")


def tilemap_k1b(a, sMt, sNt, sT0, sT1):
    a(f"s_and_b32 s{sT0}, s2, 7")
    a(f"s_lshr_b32 s{sT1}, s2, 3")
    a(f"s_cmp_ge_u32 s{sT1}, 14")
    a(f"s_cselect_b32 s{sMt}, 1, 0")
    a(f"s_cselect_b32 s{sNt}, 14, 0")
    a(f"s_sub_u32 s{sNt}, s{sT1}, s{sNt}")
    a(f"s_lshl_b32 s{sT0}, s{sT0}, 1")
    a(f"s_add_u32 s{sMt}, s{sMt}, s{sT0}")


def tilemap_k2(a, sMt, sNt, sT0, sT1):
    a(f"s_and_b32 s{sT0}, s2, 7")
    a(f"s_lshr_b32 s{sT1}, s2, 3")
    a(f"s_mul_i32 s{sT0}, s{sT0}, 28")
    a(f"s_add_u32 s{sT0}, s{sT0}, s{sT1}")
    a(f"s_mul_i32 s{sMt}, s{sT0}, 205")
    a(f"s_lshr_b32 s{sMt}, s{sMt}, 11")
    a(f"s_mul_i32 s{sNt}, s{sMt}, 10")
    a(f"s_sub_u32 s{sNt}, s{sT0}, s{sNt}")


HEADER = """; Kernarg layout for this problem (64 bytes, ptrs only, base s[0:1]):
"""


def main():
    out = sys.argv[1] if len(sys.argv) > 1 else "standalone__dense_activation_squared_relu__prompt.s"
    a = Asm()
    E = lambda k, d: int(os.environ.get(k, d))
    k1 = dict(name="ffn1_kernel", NWG=224, WM=4, WN=1, MBw=2, NTw=8, K=640, pitchA=1280, pitchW=3456, pitchO=3456,
              argA=0, argW=8, argB=16, argO=56,
              bytesA=S_ * D_ * 2, bytesW=D_ * F_ * 2, bytesB=F_ * 2, bytesO=S_ * F_ * 2,
              tilemap=(tilemap_k1b if E('K1MAP', 0) else tilemap_k1), epilogue="relu2", P=E("P1", 3), D=E("D1", 5), P0=E("P01", 2), ragged=(13, 8), ROTRED=3, ROTG=E('G1', 0))
    k2 = dict(name="ffn2_kernel", NWG=224, WM=2, WN=2, MBw=3, NTw=2, K=1728, pitchA=3456, pitchW=1280, pitchO=1280,
              argA=56, argW=24, argB=32, argO=40,
              bytesA=S_ * F_ * 2, bytesW=F_ * D_ * 2, bytesB=D_ * 2, bytesO=S_ * D_ * 2,
              tilemap=tilemap_k2, epilogue="bias", P=E("P2", 6), D=E("D2", 8), P0=E("P02", 2), ragged=None, ROTRED=1, ROTG=E('G2', 0))
    if E("PF", 0):
        k1["PREFETCH"] = (24, F_ * D_ * 2, 4)
    if E("TPF", 0):
        k1["TAILPF"] = (24, F_ * D_ * 2, E("TPF", 0))
    lds1 = gen_gemm(a, k1)
    lds2 = gen_gemm(a, k2)
    hdr = HEADER
    hdr += f"; @launch kernel=ffn1_kernel grid=({k1['NWG'] + (32 if k1.get('PREFETCH') else 0)},1,1) block=(512,1,1) lds={lds1}\n"
    hdr += f"; @launch kernel=ffn2_kernel grid=({k2['NWG']},1,1) block=(512,1,1) lds={lds2}\n"
    hdr += '.amdgcn_target "amdgcn-amd-amdhsa--gfx950"\n.text\n'
    open(out, "w").write(hdr + a.text())
    print("wrote", out, "lds", lds1, lds2)


if __name__ == "__main__":
    main()
```
